```python
import torch

def _softmax(x, axis=-1):
    return torch.softmax(x, dim=axis)

def _gelu(x):
    return torch.nn.functional.gelu(x, approximate='tanh')

def _silu(x):
    return torch.nn.functional.silu(x)

def _sigmoid(x):
    return torch.sigmoid(x)

def _layernorm(x, axis=-1, eps=1e-05):
    m = x.mean(dim=axis, keepdim=True)
    v = x.var(dim=axis, keepdim=True, unbiased=False)
    return (x - m) / torch.sqrt(v + eps)

def _scatter_add(tgt, idx, src, axis=0):
    return tgt.clone().index_add_(axis, idx, src)

def _segment_sum(src, seg, n):
    out = torch.zeros((n,) + src.shape[1:], dtype=src.dtype)
    return out.index_add_(0, seg, src)

def _pad(x, pw):
    flat = tuple((v for pair in reversed(pw) for v in pair))
    return torch.nn.functional.pad(x, flat)
kernel_name = 'interleave_layers__memory_aug_recurrent_mem_tr__mixer_channel_mlp__prompt'

def setup_inputs():

    _w = lambda a: (lambda t: t.to(torch.bfloat16) if t.is_floating_point() else t)(torch.as_tensor(a))

    def _A_setup():
        B, S, Dm = (1, 2048, 448)
        H, Dh = (16, 256)
        M, seg = (8, 32)
        seg = min(seg, S)
        S = S // seg * seg
        return {'x': _w((lambda *s: torch.randn(*s, dtype=torch.bfloat16) * 0.05)(B, S, Dm)), 'mem0': _w((lambda *s: torch.randn(*s, dtype=torch.bfloat16) * 0.8)(B, M, Dm)), 'Wq': _w((lambda *s: torch.randn(*s, dtype=torch.bfloat16) * 1.6)(Dm, H, Dh) * Dm ** (-0.5)), 'Wk': _w((lambda *s: torch.randn(*s, dtype=torch.bfloat16) * 1.6)(Dm, H, Dh) * Dm ** (-0.5)), 'Wv': _w((lambda *s: torch.randn(*s, dtype=torch.bfloat16) * 0.8)(Dm, H, Dh) * Dm ** (-0.5)), 'Wo': _w((lambda *s: torch.randn(*s, dtype=torch.bfloat16) * 0.8)(H, Dh, Dm) * (H * Dh) ** (-0.5)), 'seg_len': seg}
    _A_in = _A_setup()

    def _B_setup():
        B, S, D, F = (1, 2048, 448, 1792)
        return {'x': _w((lambda *s: torch.randn(*s, dtype=torch.bfloat16) * 0.05)(B, S, D)), 'w1': _w((lambda *s: torch.randn(*s, dtype=torch.bfloat16) * 3.2)(D, F) * D ** (-0.5)), 'b1': _w((lambda *s: torch.randn(*s, dtype=torch.bfloat16) * 1.6)(F)), 'w2': _w((lambda *s: torch.randn(*s, dtype=torch.bfloat16) * 0.1)(F, D) * F ** (-0.5)), 'b2': _w((lambda *s: torch.randn(*s, dtype=torch.bfloat16) * 0.1)(D))}
    _B_in = _B_setup()
    return {'A_x': _A_in['x'], 'A_mem0': _A_in['mem0'], 'A_Wq': _A_in['Wq'], 'A_Wk': _A_in['Wk'], 'A_Wv': _A_in['Wv'], 'A_Wo': _A_in['Wo'], 'A_seg_len': _A_in['seg_len'], 'B_x': _B_in['x'], 'B_w1': _B_in['w1'], 'B_b1': _B_in['b1'], 'B_w2': _B_in['w2'], 'B_b2': _B_in['b2']}

def reference(A_x, A_mem0, A_Wq, A_Wk, A_Wv, A_Wo, A_seg_len, B_x, B_w1, B_b1, B_w2, B_b2):

    def _A_ref(x, mem0, Wq, Wk, Wv, Wo, seg_len):
        B, S, Dm = x.shape
        H, Dh = (Wq.shape[1], Wq.shape[2])
        M = mem0.shape[1]
        scale = Dh ** (-0.5)
        n_seg = S // seg_len
        L = M + seg_len
        idx = torch.arange(L)
        mask = (idx[:, None] < M) | (idx[:, None] >= idx[None, :])
        mem = mem0
        outs = []
        for s in range(n_seg):
            xs = x[:, s * seg_len:(s + 1) * seg_len, :].clone()
            h = torch.concatenate([mem, xs], axis=1)
            q = torch.einsum('btd,dhe->bhte', h, Wq)
            k = torch.einsum('btd,dhe->bhte', h, Wk)
            v = torch.einsum('btd,dhe->bhte', h, Wv)
            scores = torch.einsum('bhqe,bhke->bhqk', q, k) * scale
            scores = torch.where(mask[None, None], scores, -1000000000.0)
            p = _softmax(scores, axis=-1)
            o = torch.einsum('bhqk,bhke->bhqe', p, v)
            o = torch.einsum('bhte,hed->btd', o, Wo)
            mem = o[:, :M, :].clone()
            outs.append(o[:, M:, :])
        return torch.concatenate(outs, axis=1)

    def _B_ref(x, w1, b1, w2, b2):
        y = _layernorm(x, axis=-1)
        h = _gelu(torch.einsum('bsd,df->bsf', y, w1) + b1)
        return torch.einsum('bsf,fd->bsd', h, w2) + b2
    x = A_x
    x = x + _A_ref(_layernorm(x, axis=-1), A_mem0, A_Wq, A_Wk, A_Wv, A_Wo, A_seg_len)
    x = x + _B_ref(_layernorm(x, axis=-1), B_w1, B_b1, B_w2, B_b2)
    x = x + _A_ref(_layernorm(x, axis=-1), A_mem0, A_Wq, A_Wk, A_Wv, A_Wo, A_seg_len)
    x = x + _B_ref(_layernorm(x, axis=-1), B_w1, B_b1, B_w2, B_b2)
    return x
```

```python
import re

TRANS = ('v_exp_f32', 'v_log_f32', 'v_rcp_f32', 'v_rsq_f32', 'v_sqrt_f32', 'v_sin_f32', 'v_cos_f32')
REG_RE = re.compile(r'^(-|abs\(|\|)*([vas])(\d+|\[(\d+):(\d+)\])\)?\|?$')

def regs_of(tok):
    tok = tok.strip()
    if tok in ('vcc', 'exec', 'm0', 'scc'):
        return [tok]
    if tok in ('vcc_lo', 'vcc_hi'): return ['vcc']
    if tok in ('exec_lo', 'exec_hi'): return ['exec']
    m = REG_RE.match(tok)
    if not m: return []
    k = m.group(2)
    if m.group(4) is not None:
        return [f'{k}{i}' for i in range(int(m.group(4)), int(m.group(5)) + 1)]
    return [f'{k}{int(m.group(3))}']

def v(i, n=1): return f'v{i}' if n == 1 else f'v[{i}:{i+n-1}]'
def a(i, n=1): return f'a{i}' if n == 1 else f'a[{i}:{i+n-1}]'
def s(i, n=1): return f's{i}' if n == 1 else f's[{i}:{i+n-1}]'

class Ins:
    __slots__ = ('text', 'op', 'defs', 'uses', 'kind', 'mA', 'mC', 'passes', 'target', 'wide', 'dpp', 'ops')
    def __init__(self, text):
        self.text = text
        body = text.split(';')[0].strip()
        parts = body.split(None, 1)
        op = self.op = parts[0]
        rest = parts[1] if len(parts) > 1 else ''
        toks = [t.strip() for t in rest.split(',')] if rest else []
        mods = ''
        if toks:
            last = toks[-1].split(None, 1)
            m = re.search(r'\s(offen|offset|off\b|op_sel|neg_|row_|quad_perm|bound_ctrl|cbsz|abid|blgp|bitop3|sc0|sc1|nt\b|lds\b|glc|clamp|mul:|div:|dst_sel|src0_sel|src1_sel)', ' ' + rest)
            if m and m.group(1) != 'off':
                cut = m.start()
                mods = (' ' + rest)[cut:]
                toks = [t.strip() for t in (' ' + rest)[:cut].split(',') if t.strip()]
            else:
                toks = [t.split()[0] if t.split() else t for t in toks]
                mods = rest
        self.ops = toks
        R = [regs_of(t) for t in toks]
        flat = lambda L: [x for l in L for x in l]
        self.defs = []; self.uses = []; self.kind = 'other'
        self.mA = []; self.mC = []; self.passes = 0; self.target = None; self.wide = False
        self.dpp = ('_dpp' in op) or ('row_' in mods) or ('quad_perm' in mods)
        if op.startswith('v_mfma') or op.startswith('v_smfmac'):
            self.kind = 'mfma'
            self.passes = 8 if '32x32' in op else 4
            self.defs = R[0]
            if op.startswith('v_smfmac'):
                self.mA = flat(R[1:4]); self.mC = R[0]
            else:
                self.mA = flat(R[1:3]); self.mC = R[3]
            self.uses = self.mA + self.mC
        elif op.startswith('v_'):
            self.kind = 'valu'
            if 'permlane' in op and 'swap' in op:
                self.defs = flat(R[:2]); self.uses = flat(R[:2])
            elif op.startswith('v_add_co') or op.startswith('v_sub_co') or op.startswith('v_addc_co') or op.startswith('v_mad_u64'):
                self.defs = flat(R[:2]); self.uses = flat(R[2:])
            else:
                self.defs = R[0]; self.uses = flat(R[1:])
                if op.startswith(('v_fmac', 'v_dot2c', 'v_pk_fmac', 'v_writelane')) or self.dpp or 'dst_sel' in mods:
                    self.uses = self.uses + R[0]
        elif op.startswith('ds_'):
            self.kind = 'ds'
            if op.startswith(('ds_read', 'ds_bpermute', 'ds_permute', 'ds_swizzle')) or '_rtn' in op:
                self.defs = R[0]; self.uses = flat(R[1:])
            else:
                self.uses = flat(R)
        elif op.startswith(('buffer_', 'global_')):
            self.kind = 'vmem'
            islds = bool(re.search(r'\blds\b', mods)) or '_lds_' in op
            if op in ('buffer_wbl2', 'buffer_inv'):
                pass
            elif 'load' in op and not islds:
                self.defs = R[0]; self.uses = flat(R[1:])
            elif 'atomic' in op and 'sc0' in mods:
                self.defs = R[0]; self.uses = flat(R) if op.startswith('buffer') else flat(R[1:])
            else:
                self.uses = flat(R)
                if islds: self.uses = self.uses + ['m0']
                if 'store' in op and ('x4' in op or 'x3' in op):
                    self.wide = R[0] if op.startswith('buffer') else R[1]
        elif op.startswith('s_load') or op in ('s_memtime', 's_memrealtime'):
            self.kind = 'smem'; self.defs = R[0]; self.uses = flat(R[1:])
        elif op.startswith('s_cbranch') or op == 's_branch':
            self.kind = 'branch'; self.target = toks[0]
        elif op in ('s_waitcnt', 's_nop', 's_barrier', 's_endpgm', 's_sleep', 's_setprio'):
            self.kind = op
        elif op.startswith('s_'):
            self.kind = 'salu'
            if op.startswith(('s_cmp', 's_bitcmp')):
                self.uses = flat(R)
            else:
                self.defs = R[0]; self.uses = flat(R[1:])
                if 'saveexec' in op: self.defs = self.defs + ['exec']
        else:
            raise ValueError('unknown op: ' + text)

class State:
    def __init__(self):
        self.ev = {}
        self.vm = {}
        self.lg = {}
        self.sm = set()
        self.smem_out = False
    def copy(self):
        t = State(); t.ev = dict(self.ev); t.vm = dict(self.vm); t.lg = dict(self.lg); t.sm = set(self.sm); t.smem_out = self.smem_out
        return t
    def merge(self, o):
        for k, x in o.ev.items():
            if k not in self.ev or x[0] < self.ev[k][0]: self.ev[k] = x
        for d, e in ((self.vm, o.vm), (self.lg, o.lg)):
            for k, x in e.items():
                d[k] = min(d.get(k, x), x)
        self.sm |= o.sm; self.smem_out |= o.smem_out
    def age(self, n):
        self.ev = {k: (x[0] + n, x[1]) for k, x in self.ev.items() if x[0] + n < 24}

class Asm:
    def __init__(self):
        self.items = []
        self.uid = 0
    def __call__(self, text):
        for line in text.split('\n'):
            t = line.strip()
            if not t or t.startswith(';'): continue
            if re.match(r'^[\w.$]+:$', t): self.items.append(('label', t[:-1]))
            elif t.startswith('.'): self.items.append(('raw', t))
            else: self.items.append(('ins', Ins(t)))
    def raw(self, text): self.items.append(('raw', text))
    def label(self, name): self.items.append(('label', name))
    def newlabel(self, base):
        self.uid += 1
        return f'L{base}_{self.uid}'
    def reset(self): self.items.append(('reset', None))

    def need(self, st, I):
        n = 0
        def req(kind, regs, ws):
            nonlocal n
            for r in regs:
                e = st.ev.get((kind, r))
                if e is not None: n = max(n, (ws(e[1]) if callable(ws) else ws) - e[0])
        vg = lambda L: [r for r in L if r[0] in 'va' and r != 'vcc']
        sg = lambda L: [r for r in L if (r[0] == 's' and r != 'scc') or r == 'vcc']
        if I.kind == 'mfma':
            req('valu', I.uses, 2)
            req('dot', I.uses, 3)
            req('mfma', I.mA, lambda x: x[0] + 4)
            for r in I.mC:
                e = st.ev.get(('mfma', r))
                if e is not None and not (e[1][1] == tuple(I.mC) and e[1][2] == I.op):
                    n = max(n, e[1][0] + 4 - e[0])
            if I.mC != I.defs:
                req('mfma', I.defs, lambda x: x[0] + 2)
        elif I.kind == 'valu':
            req('mfma', vg(I.uses) + vg(I.defs), lambda x: x[0] + 4)
            req('mfmaC', vg(I.defs), lambda x: x - 1)
            if not any(I.op.startswith(t) for t in TRANS):
                req('trans', vg(I.uses), 1)
            if 'permlane' in I.op or I.dpp: req('valu', vg(I.uses), 2)
            if I.op.startswith(('v_readlane', 'v_readfirstlane')): req('valu', vg(I.uses), 1)
            us = sg(I.uses)
            if I.op.startswith('v_cndmask') and len(I.ops) == 3: us = us + ['vcc']
            req('valus', us, 4 if I.op.startswith(('v_readlane', 'v_writelane')) else 2)
            req('wide', vg(I.defs), 2)
            req('opsel', vg(I.uses) + vg(I.defs), 1)
            if I.op.startswith('v_dot'): req('dot', [r for t in I.ops[1:3] for r in regs_of(t)], 3)
            else: req('dot', vg(I.uses) + vg(I.defs), 3)
        elif I.kind in ('vmem', 'ds'):
            req('mfma', vg(I.uses) + vg(I.defs), lambda x: x[0] + 4)
            req('dot', vg(I.uses), 3)
            if I.kind == 'vmem': req('valus', sg(I.uses), 5)
            req('wide', vg(I.defs), 1)
            if 'm0' in I.uses: req('salu', ['m0'], 1)
        return n

    def finish(self):
        out = []
        st = State(); alive = True
        pend = {}
        seen = set()
        for kind, it in self.items:
            if kind == 'raw':
                out.append(it); continue
            if kind == 'reset':
                st = State(); alive = True; continue
            if kind == 'label':
                seen.add(it)
                if it in pend:
                    if alive: st.merge(pend[it])
                    else: st = pend[it]
                elif not alive:
                    st = State()
                alive = True
                out.append(it + ':'); continue
            I = it
            if I.kind == 's_waitcnt':
                m = re.search(r'vmcnt\((\d+)\)', I.text)
                if m: st.vm = {r: c for r, c in st.vm.items() if c < int(m.group(1))}
                m = re.search(r'lgkmcnt\((\d+)\)', I.text)
                if m:
                    k = int(m.group(1))
                    if k == 0: st.lg = {}; st.sm = set(); st.smem_out = False
                    elif not st.smem_out: st.lg = {r: c for r, c in st.lg.items() if c < k}
            else:
                touched = I.uses + I.defs
                w = []
                tv = [r for r in touched if r in st.vm]
                if I.kind == 'vmem': tv = [r for r in I.uses if r in st.vm]
                if tv:
                    k = min(63, min(st.vm[r] for r in tv)); w.append(f'vmcnt({k})')
                    st.vm = {r: c for r, c in st.vm.items() if c < k}
                tl = [r for r in touched if r in st.lg]
                if I.kind == 'ds': tl = [r for r in I.uses if r in st.lg]
                ts = [r for r in touched if r in st.sm]
                if ts or (tl and st.smem_out):
                    w.append('lgkmcnt(0)'); st.lg = {}; st.sm = set(); st.smem_out = False
                elif tl:
                    k = min(15, min(st.lg[r] for r in tl)); w.append(f'lgkmcnt({k})')
                    st.lg = {r: c for r, c in st.lg.items() if c < k}
                if w:
                    out.append('    s_waitcnt ' + ' '.join(w)); st.age(1)
            n = self.need(st, I)
            while n > 0:
                k = min(n, 16)
                out.append(f'    s_nop {k-1}'); st.age(k); n -= k
            out.append('    ' + I.text)
            adv = 1
            if I.kind == 's_nop': adv = int(I.ops[0], 0) + 1
            st.age(adv)
            if I.kind == 'valu':
                tr = any(I.op.startswith(t) for t in TRANS)
                for r in I.defs:
                    if r[0] in 'va' and r != 'vcc':
                        st.ev[('valu', r)] = (0, None)
                        st.ev.pop(('mfma', r), None)
                        if I.op.startswith('v_dot'): st.ev[('dot', r)] = (0, None)
                        if tr: st.ev[('trans', r)] = (0, None)
                        else: st.ev.pop(('trans', r), None)
                        if 'dst_sel' in I.text or ('op_sel:' in I.text and not I.op.startswith('v_pk')): st.ev[('opsel', r)] = (0, None)
                    else:
                        st.ev[('valus', r)] = (0, None)
            elif I.kind == 'mfma':
                for r in I.defs: st.ev[('mfma', r)] = (0, (I.passes, tuple(I.defs), I.op))
                for r in I.mC: st.ev[('mfmaC', r)] = (0, I.passes)
            elif I.kind == 'salu':
                for r in I.defs:
                    st.ev.pop(('valus', r), None)
                    if r == 'm0': st.ev[('salu', 'm0')] = (0, None)
            elif I.kind == 'vmem':
                st.vm = {r: c + 1 for r, c in st.vm.items()}
                for r in I.defs: st.vm[r] = 0
                if I.wide:
                    for r in I.wide: st.ev[('wide', r)] = (0, None)
            elif I.kind == 'ds':
                st.lg = {r: c + 1 for r, c in st.lg.items()}
                for r in I.defs: st.lg[r] = 0
            elif I.kind == 'smem':
                st.smem_out = True
                for r in I.defs: st.sm.add(r)
            elif I.kind == 'branch':
                if I.target not in seen:
                    if I.target in pend: pend[I.target].merge(st)
                    else: pend[I.target] = st.copy()
                if I.op == 's_branch': alive = False
            elif I.kind == 's_endpgm':
                alive = False
        return '\n'.join(out) + '\n'
```

```python
from asmlib import *
from layout import *
from common import *
from prep import srd, fbits

L_XS, L_MEM, L_RED1, L_RED2, L_PARK = 0, 28672, 36864, 40960, 49152
LANE16, XSG, XSW, XSR0, XSR1, IDX, MEM1, MEM2, PARK, PMA, PMB, LANE8, RED1R, RED2W, RED2R, LANE4, RES, RESV, TMP = range(1, 20)
SEL = 20
VZ = lambda hh: 24 + 4 * hh
V1 = lambda hh: 40 + 2 * hh
sW, sXCC, sRANK, sLAYER, sTEAM, sH, sU, sJ, sSEG, sN, sTB, sBIG = range(20, 32)
sXS, sMEMR, sMEMW, sXA, sRES, sKX, sKM, sFL, sPW, sPC = 32, 33, 34, 35, 48, 49, 50, 51, 52, 53
sP = lambda hh: 54 + hh
sT0, sT1 = 58, 59
sMASK = lambda r: 60 + 2 * r
sLO8 = 68
sB = 71
MF = 'v_mfma_f32_16x16x32_bf16'
MF16 = 'v_mfma_f32_16x16x16_bf16'
SM = 'v_smfmac_f32_16x16x64_bf16'

class AW:
    X = False
    @staticmethod
    def wa(tl, t, n=4): return a(tl * 56 + t * 4, n)
    @staticmethod
    def wb(hh, t, n=4):
        q = hh * 56 + t * 4
        return a(224 + q, n) if q < 32 else v(120 + q - 32, n)
    MST, FR, ZACC, PG, ACCM = 108, 80, 64, 80, 48
class XW:
    X = True
    @staticmethod
    def wb(hh, t, n=4): return a(hh * 56 + t * 4, n)
    MST, FR, ZACC, PG, ACCM = 80, 144, 172, 88, 128

def xs_read(A, dst, t, mt):
    A(f'ds_read_b128 {v(dst,4)}, v{XSR1 if t & 1 else XSR0} offset:{L_XS + (t>>1)*4096 + mt*2048}')

def cvt(A, d, src):
    A(f'v_cvt_pk_bf16_f32 v{d}, v{src}, v{src+1}\nv_cvt_pk_bf16_f32 v{d+1}, v{src+2}, v{src+3}')

def job_offsets(A, R):
    A(f"""
    s_mul_i32 s{sT0}, s{sSEG}, 28672
    s_mov_b32 s{sXS}, {XS1}
    s_cmp_eq_u32 s{sLAYER}, 0
    s_cselect_b32 s{sXS}, {XS0}, s{sXS}
    s_add_u32 s{sXS}, s{sXS}, s{sT0}
    s_lshl_b32 s{sT1}, s{sJ}, 5
    s_add_u32 s{sRES}, s{sT0}, s{sT1}
    s_mul_i32 s{sXA}, s{sLAYER}, {XBYTES}
    s_add_u32 s{sXA}, s{sXA}, s{sT0}
    s_lshl_b32 s{sT1}, s{sJ}, 10
    s_add_u32 s{sXA}, s{sXA}, s{sT1}
    s_lshl_b32 s{sT1}, s{sW}, 8
    s_add_u32 s{sXA}, s{sXA}, s{sT1}
    s_add_u32 s{sXA}, s{sXA}, {XA}
    s_lshl_b32 s{sMEMR}, s{sSEG}, 14
    s_lshl_b32 s{sT1}, s{sLAYER}, 13
    s_xor_b32 s{sT1}, s{sT1}, s3
    s_add_u32 s{sMEMR}, s{sMEMR}, s{sT1}
    s_lshl_b32 s{sT1}, s{sJ}, 8
    s_add_u32 s{sMEMW}, s{sMEMR}, s{sT1}
    s_add_u32 s{sMEMW}, s{sMEMW}, 16384
    s_and_b32 s{sT0}, s{sN}, 1
    s_mul_i32 s{sKX}, s{sT0}, {16*28672}
    s_mul_i32 s{sT1}, s{sH}, 28672
    s_add_u32 s{sKX}, s{sKX}, s{sT1}
    s_add_u32 s{sKX}, s{sKX}, s{sBIG}
    s_lshl_b32 s{sT0}, s{sT0}, 16
    s_add_u32 s{sT0}, s{sT0}, s{sTB}
    s_add_u32 s{sT0}, s{sT0}, {T_P}
    s_lshl_b32 s{sT1}, s{sW}, 14
    s_add_u32 s{sP(0)}, s{sT0}, s{sT1}
    s_add_u32 s{sP(1)}, s{sP(0)}, 4096
    s_add_u32 s{sP(2)}, s{sP(0)}, 8192
    s_add_u32 s{sP(3)}, s{sP(0)}, 12288
    """)
    if R.X:
        A(f"""
        s_lshl_b32 s{sT1}, s{sH}, 12
        s_add_u32 s{sPW}, s{sT0}, s{sT1}
        s_mov_b32 s{sT1}, 0x10000
        s_bitcmp1_b32 s{sN}, 0
        s_cselect_b32 s{sT1}, 0xffff0000, s{sT1}
        s_add_u32 s{sPC}, s{sPW}, s{sT1}
        """)
    else:
        A(f's_lshl_b32 s{sT1}, s{sB}, 12\ns_add_u32 s{sKX}, s{sKX}, s{sT1}')

def load_xs(A):
    ld = lambda tp: f'buffer_load_dwordx4 {v(80+4*tp,4)}, v{XSG}, s[8:11], s{sXS} offen offset:{tp*128} sc1'
    poll(A, [ld(6)], regs(104, 4), TMP)
    poll(A, [ld(tp) for tp in range(6)], regs(80, 24), TMP)
    for tp in range(7):
        A(f'ds_write_b128 v{XSW}, {v(80+4*tp,4)} offset:{L_XS + tp*4096}')
    barrier(A)

def g1(A, R):
    acc = lambda tl, mt: 48 + (tl * 2 + mt) * 4
    fr = lambda t, mt: 80 + ((t & 1) * 2 + mt) * 4
    xs_read(A, fr(0, 0), 0, 0); xs_read(A, fr(0, 1), 0, 1)
    for t in range(14):
        for mt in range(2):
            if t < 13: xs_read(A, fr(t + 1, mt), t + 1, mt)
            for tl in range(4):
                A(f'{MF} {v(acc(tl,mt),4)}, {R.wa(tl,t)}, {v(fr(t,mt),4)}, {"0" if t == 0 else v(acc(tl,mt),4)}')
    for mt in range(2):
        for zz in range(2):
            o = 104 + (mt * 2 + zz) * 4
            cvt(A, o, acc(2 * zz, mt)); cvt(A, o + 2, acc(2 * zz + 1, mt))
            A(f'buffer_store_dwordx4 {v(o,4)}, v{LANE16}, s[8:11], s{sKX} offen offset:{(zz*2+mt)*1024}')

def kx_flag(A):
    A(f"""
    s_waitcnt vmcnt(0)
    v_mov_b32 v{TMP}, s{sN}
    s_mov_b64 exec, 1
    buffer_store_dword v{TMP}, off, s[8:11], s{sFL}
    s_mov_b64 exec, -1
    """)

def g2(A, R):
    acc = lambda hh, mt: 48 + (hh * 2 + mt) * 4
    fr = lambda t, mt: 80 + ((t & 1) * 2 + mt) * 4
    pk = lambda t: 96 + (t & 1) * 4
    prd = lambda t: A(f'ds_read_b128 {v(pk(t),4)}, v{PARK} offset:{t*1024}')
    xs_read(A, fr(0, 0), 0, 0); xs_read(A, fr(0, 1), 0, 1)
    if not R.X: prd(0)
    for t in range(14):
        if t == 3 and not R.X: kx_flag(A)
        for mt in range(2):
            if t < 13:
                xs_read(A, fr(t + 1, mt), t + 1, mt)
                if mt == 1 and not R.X: prd(t + 1)
            for hh in range(4):
                w = v(pk(t), 4) if (hh == 3 and not R.X) else R.wb(hh, t)
                A(f'{MF} {v(acc(hh,mt),4)}, {v(fr(t,mt),4)}, {w}, {"0" if t == 0 else v(acc(hh,mt),4)}')
    for hh in range(4): cvt(A, VZ(hh), acc(hh, 0))
    for hh in range(4): cvt(A, V1(hh), acc(hh, 1))

def res_load(A):
    return f'buffer_load_dword v{RESV}, v{RES}, s[12:15], s{sRES} offen sc1'

def get_mem(A, R):
    m = R.MST
    poll(A, [f'buffer_load_dwordx4 {v(m,4)}, v{MEM1}, s[8:11], s{sMEMR} offen sc1',
             f'buffer_load_dwordx4 {v(m+4,4)}, v{MEM2}, s[8:11], s{sMEMR} offen sc1'], regs(m, 8), TMP)
    A(f'ds_write_b128 v{MEM1}, {v(m,4)} offset:{L_MEM}\nds_write_b128 v{MEM2}, {v(m+4,4)} offset:{L_MEM}')
    barrier(A)

def mem_frags(A, R):
    for b in range(7):
        A(f'ds_read_b128 {v(R.FR+4*b,4)}, v{LANE16} offset:{L_MEM + b*1024}')

def zero(A, base, n):
    for r in range(base, base + n): A(f'v_mov_b32 v{r}, 0')

def km(A, R):
    acc = lambda tl: 48 + 4 * tl
    C = lambda tt: 108 + 4 * tt
    def tile(tl, hooks={}):
        for b in range(7):
            A(f'{SM} {v(acc(tl),4)}, {v(R.FR+4*b,4)}, {R.wa(tl,2*b,8)}, v{IDX}')
            if b in hooks: hooks[b]()
    tile(0); tile(2)
    tile(1, {1: lambda: cvt(A, C(0), acc(0))})
    tile(3, {0: lambda: cvt(A, C(0) + 2, acc(2)),
             2: lambda: A(f'{MF} {v(acc(0),4)}, {v(C(0),4)}, {v(SEL,4)}, 0'),
             5: lambda: cvt(A, C(1), acc(1))})
    cvt(A, 116, acc(0))
    cvt(A, C(1) + 2, acc(3))
    A(f'{MF} {v(acc(1),4)}, {v(C(1),4)}, {v(SEL,4)}, 0')
    cvt(A, 118, acc(1))
    for r in range(116, 120): A(f'v_min_u32 v{r}, -2, v{r}')
    A(f'buffer_store_dwordx4 v[116:119], v{LANE16}, s[8:11], s{sKM} offen')

def zpass(A, R):
    acc = lambda hh: R.ZACC + 4 * hh
    pk = lambda b: 48 + (b & 1) * 8
    def prd(b):
        A(f'ds_read_b128 {v(pk(b),4)}, v{PARK} offset:{2*b*1024}\nds_read_b128 {v(pk(b)+4,4)}, v{PARK} offset:{(2*b+1)*1024}')
    if R.X:
        for hh in range(4):
            for b in range(7):
                A(f'{SM} {v(acc(hh),4)}, {v(R.FR+4*b,4)}, {R.wb(hh,2*b,8)}, v{IDX}')
    else:
        prd(0)
        for b in range(7):
            if b < 6: prd(b + 1)
            for hh in range(4):
                w = v(pk(b), 8) if hh == 3 else R.wb(hh, 2 * b, 8)
                A(f'{SM} {v(acc(hh),4)}, {v(R.FR+4*b,4)}, {w}, v{IDX}')
    for hh in range(4): cvt(A, VZ(hh) + 2, acc(hh))

def pv_mem(A, R, st):
    G = R.PG
    A(f's_mov_b64 exec, s[{sLO8}:{sLO8+1}]')
    lds = []
    for hh in range(4):
        lds.append(f'buffer_load_dwordx4 {v(G+4*hh,4)}, v{PMA}, s[8:11], s{sP(hh)} offen sc1')
        lds.append(f'buffer_load_dwordx2 {v(G+16+2*hh,2)}, v{PMB}, s[8:11], s{sP(hh)} offen offset:512 sc1')
    poll(A, lds, regs(G, 24), TMP)
    A('s_mov_b64 exec, -1')
    st.stamp(5)
    D = v(R.ACCM, 4)
    for hh in range(4):
        A(f'{MF} {D}, {v(VZ(hh),4)}, {v(G+4*hh,4)}, {"0" if hh == 0 else D}')
        if hh & 1: A(f'{MF} {D}, {v(V1(hh-1),4)}, {v(G+14+2*hh,4)}, {D}')
    A(f'ds_write_b128 v{MEM1}, {D} offset:{L_RED1}')
    barrier(A)
    if not R.X:
        L = A.newlabel('nored')
        A(f's_cmp_lg_u32 s{sW}, 0\ns_cbranch_scc1 {L}')
        for w in range(4): A(f'ds_read_b64 {v(G+2*w,2)}, v{RED1R} offset:{L_RED1 + w*1024}')
        A(f"""
        v_pk_add_f32 {v(G,2)}, {v(G,2)}, {v(G+2,2)}
        v_pk_add_f32 {v(G+4,2)}, {v(G+4,2)}, {v(G+6,2)}
        v_pk_add_f32 {v(G,2)}, {v(G,2)}, {v(G+4,2)}
        v_cvt_pk_bf16_f32 v{G}, v{G}, v{G+1}
        v_min_u32 v{G}, -2, v{G}
        buffer_store_dword v{G}, v{LANE4}, s[8:11], s{sMEMW} offen sc1
        {L}:
        """)

def pv_tok(A, R):
    G = R.PG
    lds = []
    for hh in range(4):
        lds.append(f'buffer_load_dwordx4 {v(G+4*hh,4)}, v{LANE16}, s[8:11], s{sP(hh)} offen offset:1024 sc1')
        lds.append(f'buffer_load_dwordx4 {v(G+16+4*hh,4)}, v{LANE16}, s[8:11], s{sP(hh)} offen offset:2048 sc1')
    last = [f'buffer_load_dwordx2 {v(G+32+2*hh,2)}, v{LANE8}, s[8:11], s{sP(hh)} offen offset:3072 sc1' for hh in range(4)]
    poll(A, last + [res_load(A)], regs(G + 32, 8) + [RESV], TMP)
    poll(A, lds, regs(G, 32), TMP)
    D0, D1 = v(R.ACCM + 4, 4), v(R.ACCM + 8, 4)
    for hh in range(4):
        A(f'{MF} {D0}, {v(VZ(hh),4)}, {v(G+4*hh,4)}, {"0" if hh == 0 else D0}')
        A(f'{MF} {D1}, {v(VZ(hh),4)}, {v(G+16+4*hh,4)}, {"0" if hh == 0 else D1}')
        if hh & 1: A(f'{MF} {D1}, {v(V1(hh-1),4)}, {v(G+30+2*hh,4)}, {D1}')
    A(f'ds_write_b128 v{RED2W}, {D0} offset:{L_RED2}\nds_write_b128 v{RED2W}, {D1} offset:{L_RED2+1024}')
    A(f'v_lshlrev_b32 v{G+8}, 16, v{RESV}\nv_and_b32 v{G+9}, 0xffff0000, v{RESV}')
    barrier(A)
    for w in range(4): A(f'ds_read_b64 {v(G+2*w,2)}, v{RED2R} offset:{L_RED2 + w*2048}')
    A(f"""
    v_pk_add_f32 {v(G,2)}, {v(G,2)}, {v(G+2,2)}
    v_pk_add_f32 {v(G+4,2)}, {v(G+4,2)}, {v(G+6,2)}
    v_pk_add_f32 {v(G,2)}, {v(G,2)}, {v(G+8,2)}
    v_pk_add_f32 {v(G,2)}, {v(G,2)}, {v(G+4,2)}
    v_cvt_pk_bf16_f32 v{G}, v{G}, v{G+1}
    v_min_u32 v{G}, -2, v{G}
    buffer_store_dword v{G}, v{LANE4}, s[8:11], s{sXA} offen sc1
    """)

def softmax(A, xb, mb, outs, t):
    allr = [r for b in xb + [mb] for r in regs(b, 4)]
    A(f'v_max3_f32 v{t}, v{allr[0]}, v{allr[1]}, v{allr[2]}')
    rest = allr[3:]
    while len(rest) >= 2:
        A(f'v_max3_f32 v{t}, v{t}, v{rest[0]}, v{rest[1]}'); rest = rest[2:]
    if rest: A(f'v_max_f32 v{t}, v{t}, v{rest[0]}')
    xg(A, 'v_max_f32', t, t + 1)
    for r in allr: A(f'v_sub_f32 v{r}, v{r}, v{t}')
    for r in allr[-4:] + allr[:-4]: A(f'v_exp_f32 v{r}, v{r}')
    A(f'v_add_f32 v{t}, v{mb}, v{mb+1}\nv_add_f32 v{t+1}, v{mb+2}, v{mb+3}\nv_add_f32 v{t}, v{t}, v{t+1}\nv_mul_f32 v{t}, 0.5, v{t}')
    for r in allr[:-4]: A(f'v_add_f32 v{t}, v{t}, v{r}')
    xg(A, 'v_add_f32', t, t + 1)
    A(f'v_rcp_f32 v{t}, v{t}')
    for r in allr: A(f'v_mul_f32 v{r}, v{r}, v{t}')
    for b, o in zip(xb + [mb], outs):
        cvt(A, o, b)
        A(f'v_min_u32 v{o}, -2, v{o}\nv_min_u32 v{o+1}, -2, v{o+1}')

NSEG = 64
def next_job(A, L):
    A(f"""
    s_add_u32 s{sSEG}, s{sSEG}, 3
    s_add_u32 s{sN}, s{sN}, 1
    s_nop 7
    s_cmp_lt_u32 s{sSEG}, {NSEG}
    s_cbranch_scc1 {L}
    s_branch Lend
    """)

def gen_attn(A, opts):
    global NSEG
    if 'one' in opts: NSEG = 3
    st = Stamps(A, 'stamp' in opts)
    st.init()
    A(f"""
    s_mov_b32 s3, {8192 if 'par1' in opts else 0}
    s_lshr_b32 s{sH}, s{sRANK}, 1
    s_and_b32 s{sU}, s{sRANK}, 1
    s_add_u32 s{sT0}, s{sH}, 16
    s_cmp_eq_u32 s{sU}, 1
    s_cselect_b32 s{sJ}, s{sH}, s{sT0}
    s_lshl_b32 s{sB}, s{sU}, 2
    s_add_u32 s{sB}, s{sB}, s{sW}
    s_mov_b32 s{sSEG}, s{sTEAM}
    s_mov_b32 s{sN}, 0
    s_add_u32 s{sT0}, s6, {XB}
    s_addc_u32 s{sT1}, s7, 0
    s_cmp_eq_u32 s{sLAYER}, 0
    s_cselect_b32 s12, s4, s{sT0}
    s_cselect_b32 s13, s5, s{sT1}
    s_mov_b32 s14, {XBYTES}
    s_mov_b32 s15, 0x20000
    s_mov_b32 s{sLO8}, 0x00ff00ff
    s_mov_b32 s{sLO8+1}, 0x00ff00ff
    s_mul_i32 s{sKM}, s{sH}, 7168
    s_add_u32 s{sKM}, s{sKM}, s{sTB}
    s_lshl_b32 s{sFL}, s{sH}, 7
    s_add_u32 s{sFL}, s{sFL}, s{sTB}
    s_add_u32 s{sFL}, s{sFL}, {T_FL}
    s_mul_i32 s40, s{sH}, 7
    s_add_u32 s40, s40, s{sB}
    s_mul_i32 s40, s40, {4*14336}
    s_add_u32 s40, s40, {WA}
    s_lshl_b32 s41, s{sJ}, 2
    s_add_u32 s41, s41, s{sW}
    s_mul_i32 s41, s41, {4*14336}
    s_add_u32 s41, s41, {WB}
    """)
    A(f"""
    v_lshrrev_b32 v48, 3, v0
    s_lshl_b32 s{sT0}, s{sW}, 3
    v_add_u32 v48, s{sT0}, v48              ; row = 8w + r8
    v_and_b32 v49, 7, v0                    ; c
    v_mul_u32_u24 v{XSG}, 896, v48
    v_lshl_add_u32 v{XSG}, v49, 4, v{XSG}
    v_bfe_u32 v50, v48, 1, 3
    v_xor_b32 v50, v50, v49
    v_lshlrev_b32 v50, 4, v50
    v_lshl_add_u32 v{XSW}, v48, 7, v50
    v_and_b32 v48, 15, v0                   ; n
    v_lshrrev_b32 v49, 4, v0                ; g
    v_lshrrev_b32 v50, 1, v48
    v_xor_b32 v50, v50, v49
    v_lshlrev_b32 v50, 4, v50
    v_lshl_add_u32 v{XSR0}, v48, 7, v50
    v_xor_b32 v{XSR1}, 64, v{XSR0}
    v_mov_b32 v{IDX}, 0x4444
    v_mov_b32 v50, 0xeeee
    v_cmp_lt_u32 vcc, 7, v48
    v_cndmask_b32 v{IDX}, v{IDX}, v50, vcc
    s_lshl_b32 s{sT0}, s{sW}, 10
    v_add_u32 v{MEM1}, s{sT0}, v{LANE16}
    s_cmp_eq_u32 s{sW}, 3
    s_cselect_b32 s{sT1}, 0, 4096
    v_add_u32 v{MEM2}, s{sT1}, v{MEM1}
    s_mul_i32 s{sT1}, s{sW}, 14336
    s_add_u32 s42, s{sT1}, {L_PARK}
    v_add_u32 v{PARK}, s42, v{LANE16}
    v_and_b32 v50, 7, v48
    v_lshl_add_u32 v51, v49, 3, v50
    v_lshlrev_b32 v{PMA}, 4, v51
    v_lshlrev_b32 v{PMB}, 3, v51
    v_lshlrev_b32 v{LANE8}, 3, v0
    v_lshlrev_b32 v{LANE4}, 2, v0
    v_and_b32 v51, 3, v0
    v_lshlrev_b32 v51, 8, v51
    v_bfe_u32 v52, v0, 2, 3
    v_lshl_add_u32 v51, v52, 4, v51
    v_lshrrev_b32 v52, 5, v0
    v_lshl_add_u32 v{RED1R}, v52, 3, v51
    s_lshl_b32 s{sT0}, s{sW}, 11
    v_add_u32 v{RED2W}, s{sT0}, v{LANE16}
    v_lshrrev_b32 v52, 2, v0
    v_bfe_u32 v51, v0, 1, 1
    v_lshlrev_b32 v51, 8, v51
    v_lshl_add_u32 v51, v52, 4, v51
    v_and_b32 v53, 1, v0
    v_lshl_add_u32 v51, v53, 3, v51
    s_lshl_b32 s{sT0}, s{sW}, 9
    v_add_u32 v{RED2R}, s{sT0}, v51
    s_lshr_b32 s{sT0}, s{sW}, 1
    s_mul_i32 s{sT0}, s{sT0}, 14336
    s_and_b32 s{sT1}, s{sW}, 1
    s_lshl_b32 s{sT1}, s{sT1}, 4
    s_add_u32 s{sT0}, s{sT0}, s{sT1}
    v_mul_u32_u24 v52, 896, v52
    v_and_b32 v53, 3, v0
    v_lshl_add_u32 v52, v53, 2, v52
    v_add_u32 v{RES}, s{sT0}, v52
    v_and_b32 v51, 1, v48
    v_lshlrev_b32 v51, 4, v51
    v_mov_b32 v52, 0x3f80
    v_lshlrev_b32 v51, v51, v52
    v_bfe_u32 v52, v48, 2, 1
    v_and_b32 v53, 1, v49
    v_cmp_eq_u32 vcc, v52, v53
    v_cndmask_b32 v51, 0, v51, vcc
    v_lshrrev_b32 v52, 3, v48
    v_bfe_u32 v53, v48, 1, 1
    v_lshl_add_u32 v52, v52, 1, v53
    """)
    for d in range(4):
        A(f'v_cmp_eq_u32 vcc, {d}, v52\nv_cndmask_b32 v{SEL+d}, 0, v51, vcc')
    A(f'v_lshlrev_b32 v51, 2, v49')
    for r in range(4):
        A(f'v_add_u32 v52, {r}, v51\nv_cmp_le_u32 s[{sMASK(r)}:{sMASK(r)+1}], v52, v48')
    A(f's_cmp_eq_u32 s{sB}, 7\ns_cbranch_scc1 LX')

    def wload(dst, so, q):
        A(f'buffer_load_dwordx4 {dst}, v{LANE16}, s[8:11], s{so} offen offset:{(q&3)*1024}')
        if q & 3 == 3: A(f's_add_u32 s{so}, s{so}, 4096')

    R = AW
    A(f's_lshl_b32 s{sT0}, s{sB}, 10\ns_add_u32 s{sKM}, s{sKM}, s{sT0}\ns_lshl_b32 s{sT0}, s{sB}, 2\ns_add_u32 s{sFL}, s{sFL}, s{sT0}')
    for q in range(56): wload(a(4 * q, 4), 40, q)
    A(f's_cmp_ge_u32 s{sJ}, 28\ns_cbranch_scc1 LA_now')
    for q in range(42): wload(R.wb(q // 14, q % 14), 41, q)
    A(f's_add_u32 s41, s41, 2048\ns_mov_b32 m0, s42')
    for t in range(14):
        A(f'buffer_load_dwordx4 v{LANE16}, s[8:11], s41 offen lds')
        if t < 13: A('s_add_u32 s41, s41, 1024\ns_add_u32 m0, m0, 1024')
    A('LA_now:\ns_waitcnt vmcnt(0)\nLA_job:')
    st.stamp(0); st.stamp(1)
    job_offsets(A, R)
    load_xs(A)
    st.stamp(2)
    g1(A, R)
    A(f's_cmp_ge_u32 s{sJ}, 28\ns_cbranch_scc1 LA_nob')
    g2(A, R)
    A('s_branch LA_chain\nLA_nob:')
    kx_flag(A)
    A('LA_chain:')
    zero(A, 48, 32)
    st.stamp(3)
    get_mem(A, R)
    st.stamp(4)
    mem_frags(A, R)
    km(A, R)
    A(f's_cmp_ge_u32 s{sJ}, 28\ns_cbranch_scc1 LA_next')
    zpass(A, R)
    pv_mem(A, R, st)
    st.stamp(6)
    pv_tok(A, R)
    A('LA_next:')
    st.stamp(7)
    st.flush(8, TMP)
    next_job(A, 'LA_job')

    R = XW
    A('LX:')
    for q in range(56): wload(a(4 * q, 4), 41, q)
    NATB, KMA = 20, 21
    A(f"""
    v_lshrrev_b32 v51, 1, v49
    v_lshlrev_b32 v51, 8, v51
    v_lshl_add_u32 v51, v50, 4, v51
    v_and_b32 v52, 1, v49
    v_lshl_add_u32 v{NATB}, v52, 3, v51
    v_add_u32 v{NATB}, {L_MEM}, v{NATB}
    v_lshlrev_b32 v51, 8, v49
    v_lshl_add_u32 v{KMA}, v50, 4, v51
    s_add_u32 s43, s{sKM}, 4096
    s_waitcnt vmcnt(0)
    LX_job:
    """)
    st.stamp(0); st.stamp(1)
    job_offsets(A, R)
    load_xs(A)
    st.stamp(2)
    g2(A, R)
    S00, S10, S11, SM0, SM1, SMM, S0M, S1M = [48 + 4 * i for i in range(8)]
    KX = lambda t, kt: 144 + (t * 2 + kt) * 4
    NAT = lambda t: 88 + 4 * t
    KMR = lambda t: 188 + 4 * t
    A('s_mov_b64 exec, 0x7f')
    poll(A, [f'buffer_load_dword v{TMP}, v{LANE4}, s[8:11], s{sFL} offen sc1'], None, None, cmp=f'v_cmp_gt_i32 vcc, s{sN}, v{TMP}')
    A('s_mov_b64 exec, -1')
    for q in range(28):
        A(f'buffer_load_dwordx4 {v(144+4*q,4)}, v{LANE16}, s[8:11], s{sKX} offen offset:{(q&3)*1024} sc1')
        if q & 3 == 3: A(f's_add_u32 s{sKX}, s{sKX}, 4096')
    fr = lambda t, mt: 80 + ((t & 1) * 2 + mt) * 4
    xs_read(A, fr(0, 0), 0, 0); xs_read(A, fr(0, 1), 0, 1)
    for t in range(14):
        if t < 13: xs_read(A, fr(t + 1, 0), t + 1, 0); xs_read(A, fr(t + 1, 1), t + 1, 1)
        for D, kt, mt in ((S00, 0, 0), (S10, 0, 1), (S11, 1, 1)):
            A(f'{MF} {v(D,4)}, {v(KX(t,kt),4)}, {v(fr(t,mt),4)}, {"0" if t == 0 else v(D,4)}')
    A(f'v_mov_b32 v{TMP}, 0xff800000')
    for D in (S00, S11):
        for r in range(4): A(f'v_cndmask_b32 v{D+r}, v{TMP}, v{D+r}, s[{sMASK(r)}:{sMASK(r)+1}]')
    st.stamp(3)
    get_mem(A, R)
    st.stamp(4)
    for t in range(14):
        if t & 1 == 0: A(f'v_add_u32 v22, {t*512}, v{NATB}')
        o = (t & 1) * 128
        A(f'ds_read2_b32 {v(NAT(t),2)}, v22 offset0:{o} offset1:{o+32}\nds_read2_b32 {v(NAT(t)+2,2)}, v22 offset0:{o+1} offset1:{o+33}')
    for t in range(14):
        for D, kt in ((SM0, 0), (SM1, 1)):
            A(f'{MF} {v(D,4)}, {v(KX(t,kt),4)}, {v(NAT(t),4)}, {"0" if t == 0 else v(D,4)}')
    mem_frags(A, R)
    zero(A, R.ZACC, 16)
    zpass(A, R)
    poll(A, [f'buffer_load_dwordx4 {v(KMR(t),4)}, v{KMA}, s[8:11], s{sKM if t < 8 else 43} offen offset:{((t>>1)&3)*1024 + (t&1)*128} sc1' for t in range(14)], regs(188, 56), TMP)
    for t in range(14):
        A(f'{MF} {v(SMM,4)}, {v(KMR(t),4)}, {v(NAT(t),4)}, {"0" if t == 0 else v(SMM,4)}')
    softmax(A, [SM0, SM1], SMM, [164, 168, 166], 160)
    A(f"""
    s_mov_b64 exec, s[{sLO8}:{sLO8+1}]
    buffer_store_dwordx4 v[164:167], v{PMA}, s[8:11], s{sPW} offen
    buffer_store_dwordx2 v[168:169], v{PMB}, s[8:11], s{sPW} offen offset:512
    s_mov_b64 exec, -1
    """)
    for r in range(172, 176): A(f'v_mov_b32 v{r}, -1')
    for b in range(0 if 'one' in opts else 7):
        A(f'buffer_store_dwordx4 v[172:175], v{LANE16}, s[8:11], s{sKM if b < 4 else 43} offen offset:{(b&3)*1024}')
    fr = lambda t, mt: 144 + ((t & 1) * 2 + mt) * 4
    xs_read(A, fr(0, 0), 0, 0); xs_read(A, fr(0, 1), 0, 1)
    for t in range(14):
        if t < 13: xs_read(A, fr(t + 1, 0), t + 1, 0); xs_read(A, fr(t + 1, 1), t + 1, 1)
        for D, mt in ((S0M, 0), (S1M, 1)):
            A(f'{MF} {v(D,4)}, {v(KMR(t),4)}, {v(fr(t,mt),4)}, {"0" if t == 0 else v(D,4)}')
    pv_mem(A, R, st)
    st.stamp(6)
    for q in range(4):
        A(f'buffer_store_dwordx4 v[172:175], v{LANE16}, s[8:11], s{sPC} offen offset:{q*1024}')
    softmax(A, [S00], S0M, [164, 166], 160)
    softmax(A, [S10, S11], S1M, [176, 180, 178], 160)
    A(f"""
    s_waitcnt vmcnt(0)
    buffer_store_dwordx4 v[164:167], v{LANE16}, s[8:11], s{sPW} offen offset:1024
    buffer_store_dwordx4 v[176:179], v{LANE16}, s[8:11], s{sPW} offen offset:2048
    buffer_store_dwordx2 v[180:181], v{LANE8}, s[8:11], s{sPW} offen offset:3072
    """)
    pv_tok(A, R)
    st.stamp(7)
    st.flush(8, TMP)
    next_job(A, 'LX_job')
```

```python
from asmlib import *
from layout import *
TIMEOUT = 1 << 17
SCNT = 70

def regs(base, n): return list(range(base, base + n))

def check(A, rs, tmp):
    rs = list(rs)
    if len(rs) == 1:
        A(f'v_cmp_eq_u32 vcc, -1, v{rs[0]}'); return
    if len(rs) == 2:
        A(f'v_max_u32 v{tmp}, v{rs[0]}, v{rs[1]}'); rs = []
    else:
        A(f'v_max3_u32 v{tmp}, v{rs[0]}, v{rs[1]}, v{rs[2]}'); rs = rs[3:]
    while len(rs) >= 2:
        A(f'v_max3_u32 v{tmp}, v{tmp}, v{rs[0]}, v{rs[1]}'); rs = rs[2:]
    if rs: A(f'v_max_u32 v{tmp}, v{tmp}, v{rs[0]}')
    A(f'v_cmp_eq_u32 vcc, -1, v{tmp}')

def poll(A, loads, rs, tmp, cmp=None):
    L = A.newlabel('poll')
    A(f's_mov_b32 s{SCNT}, 0\n{L}:')
    for t in loads: A(t)
    A(f's_add_u32 s{SCNT}, s{SCNT}, 1\ns_cmp_gt_u32 s{SCNT}, {TIMEOUT}\ns_cbranch_scc1 Lfail')
    if cmp: A(cmp)
    else: check(A, rs, tmp)
    A(f's_cbranch_vccnz {L}')

def xg(A, op, x, t):
    A(f'v_mov_b32 v{t}, v{x}\nv_permlane16_swap_b32 v{x}, v{t}\n{op} v{x}, v{x}, v{t}')
    A(f'v_mov_b32 v{t}, v{x}\nv_permlane32_swap_b32 v{x}, v{t}\n{op} v{x}, v{x}, v{t}')

def barrier(A):
    A('s_waitcnt lgkmcnt(0)\ns_barrier')

class Stamps:
    def __init__(self, A, on):
        self.A = A; self.on = on
    def init(self):
        if not self.on: return
        self.A(f"""
        s_lshl_b32 s90, s21, 5
        s_add_u32 s90, s90, s22
        s_lshl_b32 s90, s90, 2
        s_add_u32 s90, s90, s20
        s_lshl_b32 s90, s90, 12
        s_add_u32 s90, s90, {DBG}
        """)
    def stamp(self, k):
        if self.on: self.A(f's_memrealtime s[{72+2*k}:{73+2*k}]' if k == 0 else f's_memtime s[{72+2*k}:{73+2*k}]')
    def flush(self, n, t):
        if not self.on: return
        A = self.A
        A('s_waitcnt lgkmcnt(0)')
        for k in range(n):
            A(f'v_mov_b32 v{t}, s{72+2*k}\ns_mov_b64 exec, 1\nbuffer_store_dword v{t}, off, s[8:11], s90 offset:{4*k}\ns_mov_b64 exec, -1')
        A('s_add_u32 s90, s90, 64')
```

```python
XBYTES = 2048 * 896
WBYTES = 16 * 28 * 14 * 1024
MEM   = 0
CLR0  = 16384
TEAMB = 65 * 16384
T_KM  = 0
T_P   = 16 * 7 * 1024
T_FL  = T_P + 2 * 16 * 4096
T_S   = T_FL + 2048
T_E   = T_S + 4 * 32 * 256
TEAM_STRIDE = T_E + 4 * 16 * 1024
XS1   = TEAMB + 8 * TEAM_STRIDE
XB    = XS1 + XBYTES
XA    = XB + XBYTES
CLR_END_MIN = XA + 2 * XBYTES
CLR_PER_THREAD = -(-(CLR_END_MIN - CLR0) // (256 * 4096))
CLR_END = CLR0 + CLR_PER_THREAD * 256 * 4096
XS0   = CLR_END
WA    = XS0 + XBYTES
WB    = WA + WBYTES
BIG   = WB + WBYTES
BIG_STRIDE = 2 * 2 * 14 * 28672
PAR   = BIG + 8 * BIG_STRIDE
DBG   = PAR + 4096
WS_USED = DBG + (4 << 20)
if __name__ == '__main__':
    for k, x in list(globals().items()):
        if isinstance(x, int): print(k, x, hex(x))
```

```python
from asmlib import *
from layout import *
from prep import srd, fbits
import mlp, attn

LDS_BYTES = 131072
TIMEOUT = 1 << 17

def gen_main(A, opts):
    A(f"""
    s_cmp_ge_u32 s2, 256
    s_cbranch_scc1 Lend
    s_load_dwordx2 s[4:5], s[0:1], 0
    s_load_dwordx2 s[6:7], s[0:1], 112
    s_load_dwordx8 s[36:43], s[0:1], 64
    s_load_dwordx4 s[44:47], s[0:1], 96
    s_getreg_b32 s21, hwreg(HW_REG_XCC_ID)
    s_and_b32 s21, s21, 7
    v_lshrrev_b32 v2, 6, v0
    v_and_b32 v0, 63, v0
    v_readfirstlane_b32 s20, v2
    v_mov_b32 v3, 0
    s_waitcnt lgkmcnt(0)
    s_cmp_lg_u32 s20, 0
    s_cbranch_scc1 Lnorank
    s_lshl_b32 s22, s21, 2
    v_mov_b32 v4, s22
    v_mov_b32 v5, 1
    s_mov_b64 exec, 1
    global_atomic_add v6, v4, v5, s[46:47] sc0
    ds_write_b32 v3, v6
    s_waitcnt lgkmcnt(0)
    s_mov_b64 exec, -1
    Lnorank:
    s_barrier
    ds_read_b32 v6, v3
    """)
    srd(A, 8, 6, WS_USED)
    A(f"""
    s_lshr_b32 s23, s21, 2
    s_and_b32 s24, s21, 3
    v_lshlrev_b32 v1, 4, v0
    s_mul_i32 s30, s21, {TEAM_STRIDE}
    s_add_u32 s30, s30, {TEAMB}
    s_mul_i32 s31, s21, {BIG_STRIDE}
    s_add_u32 s31, s31, {BIG}
    v_readfirstlane_b32 s22, v6
    s_barrier
    s_cmp_ge_u32 s22, 32
    s_cbranch_scc1 Lend
    s_cmp_eq_u32 s24, 3
    s_cbranch_scc1 Lmlp
    """)
    attn.gen_attn(A, opts)
    A('Lmlp:')
    mlp.gen_mlp(A, opts)
    A("""
    Lfail:
    s_mov_b64 exec, 1
    v_mov_b32 v2, 32
    v_mov_b32 v3, 1
    global_atomic_add v2, v3, s[46:47]
    Lend:
    s_endpgm
    """)
```

```python
from asmlib import *
from layout import *
from common import *
from prep import srd, fbits
import math

L_X, L_H, L_ST, L_ST2 = 0, 28672, 36864, 37376
sW, sXCC, sRANK, sLAYER, sTEAM, sGRP, sRHO, _s27, sSEG, sN, sTB, sBIG = range(20, 32)
sXA, sPART, sFLW, sFLR, sRD, sOUT, sT0, sT1, sXSO = 32, 33, 34, 35, 48, 49, 58, 59, 50
sM56 = 68
LANE16, XW_, XR, XST, HW_, STW, STR, P16, P8, LANE4, LANE8, RESA, TMP, ST2W, ST2R = range(1, 16)
B1, CS, B2 = 16, 24, 32
ONE2, SELLO, SELHI = 36, 37, 38
MF = 'v_mfma_f32_16x16x32_bf16'
W1 = lambda tt, t, n=4: a(tt * 56 + t * 4, n)
W2 = lambda ct, ks, n=4: a(112 + (ct * 4 + ks) * 4, n)

def wavesum(A, rs, t):
    for m in ('quad_perm:[1,0,3,2]', 'quad_perm:[2,3,0,1]', 'row_half_mirror', 'row_mirror'):
        for r in rs: A(f'v_add_f32_dpp v{r}, v{r}, v{r} {m} row_mask:0xf bank_mask:0xf')
    for r in rs: xg(A, 'v_add_f32', r, t)

def gen_mlp(A, opts):
    st = Stamps(A, 'stamp' in opts)
    st.init()
    A(f"""
    s_lshr_b32 s{sGRP}, s{sRANK}, 4
    s_and_b32 s{sRHO}, s{sRANK}, 15
    s_mov_b32 s{sSEG}, s{sGRP}
    s_mov_b32 s{sN}, 0
    s_mov_b32 s{sM56}, -1
    s_mov_b32 s{sM56+1}, 0x00ffffff
    s_lshl_b32 s{sFLR}, s{sGRP}, 8
    s_add_u32 s{sFLR}, s{sFLR}, s{sTB}
    s_add_u32 s{sFLR}, s{sFLR}, {T_FL}
    s_lshl_b32 s{sT0}, s{sRHO}, 2
    s_add_u32 s{sT0}, s{sT0}, s{sW}
    s_lshl_b32 s{sT0}, s{sT0}, 2
    s_add_u32 s{sFLW}, s{sFLR}, s{sT0}
    s_mul_i32 s{sT0}, s{sGRP}, {2*14*28672}
    s_add_u32 s{sBIG}, s{sBIG}, s{sT0}
    s_add_u32 s{sT0}, s6, {XB}
    s_addc_u32 s{sT1}, s7, 0
    s_cmp_eq_u32 s{sLAYER}, 0
    s_cselect_b32 s12, s{sT0}, s44
    s_cselect_b32 s13, s{sT1}, s45
    s_mov_b32 s14, {XBYTES}
    s_mov_b32 s15, 0x20000
    v_and_b32 v48, 15, v0                   ; n
    v_lshrrev_b32 v49, 4, v0                ; g
    s_lshl_b32 s{sT0}, s{sW}, 10
    v_add_u32 v{XW_}, s{sT0}, v{LANE16}
    v_lshrrev_b32 v50, 1, v49
    v_lshlrev_b32 v50, 10, v50
    v_and_b32 v51, 1, v49
    v_lshl_add_u32 v50, v51, 8, v50
    v_lshl_add_u32 v{XR}, v48, 4, v50
    s_and_b32 s{sT0}, s{sW}, 1
    s_lshl_b32 s{sT0}, s{sT0}, 9
    s_lshr_b32 s{sT1}, s{sW}, 1
    s_mul_i32 s{sT1}, s{sT1}, {7*2048}
    s_add_u32 s{sT0}, s{sT0}, s{sT1}
    v_add_u32 v{XST}, s{sT0}, v{XR}
    s_lshl_b32 s{sT0}, s{sW}, 11
    v_add_u32 v{HW_}, s{sT0}, v{LANE16}
    v_lshlrev_b32 v{STR}, 3, v48
    s_lshl_b32 s{sT0}, s{sW}, 7
    v_add_u32 v{STW}, s{sT0}, v{STR}
    v_mul_u32_u24 v50, 896, v48
    s_mul_i32 s{sT0}, s{sW}, 224
    v_add_u32 v50, s{sT0}, v50
    v_lshl_add_u32 v{P16}, v49, 4, v50
    v_lshl_add_u32 v{P8}, v49, 3, v50
    v_lshlrev_b32 v{LANE4}, 2, v0
    v_lshlrev_b32 v{LANE8}, 3, v0
    s_and_b32 s{sT0}, s{sW}, 1
    s_lshl_b32 s60, s{sRHO}, 1
    s_add_u32 s60, s60, s{sT0}              ; token
    s_lshr_b32 s61, s{sW}, 1                ; ch
    s_mul_i32 s{sRD}, s60, 896
    s_mul_i32 s{sT0}, s61, 448
    s_add_u32 s{sRD}, s{sRD}, s{sT0}
    s_mul_i32 s{sT1}, s61, 56
    v_add_u32 v50, s{sT1}, v0               ; cq
    v_lshrrev_b32 v51, 2, v50
    v_lshlrev_b32 v51, 10, v51
    v_bfe_u32 v52, v50, 1, 1
    v_lshl_add_u32 v51, v52, 8, v51
    v_and_b32 v52, 1, v50
    v_lshl_add_u32 v51, v52, 3, v51
    s_lshr_b32 s{sT1}, s60, 4
    s_lshl_b32 s{sT1}, s{sT1}, 9
    s_and_b32 s62, s60, 15
    s_lshl_b32 s62, s62, 4
    s_add_u32 s{sT1}, s{sT1}, s62
    v_add_u32 v{RESA}, s{sT1}, v51
    s_lshl_b32 s{sT1}, s{sW}, 3
    v_mov_b32 v{ST2W}, s{sT1}
    s_and_b32 s{sT1}, s{sT1}, 8
    v_mov_b32 v{ST2R}, s{sT1}
    v_mov_b32 v{ONE2}, 0x3f803f80
    v_mov_b32 v{SELLO}, 0x3f80
    v_mov_b32 v{SELHI}, 0x3f800000
    """)
    srd(A, 16, 42, 896)
    A(f'buffer_load_dwordx2 v[40:41], v{LANE8}, s[16:19], s{sT0} offen')
    A(f"""
    v_lshlrev_b32 v{B2}, 16, v40
    v_and_b32 v{B2+1}, 0xffff0000, v40
    v_lshlrev_b32 v{B2+2}, 16, v41
    v_and_b32 v{B2+3}, 0xffff0000, v41
    s_cmp_ge_u32 s{sRHO}, 14
    s_cbranch_scc1 LM_job
    """)
    srd(A, 16, 36, 448 * 3584)
    A(f"""
    v_mul_u32_u24 v50, 3584, v49
    v_lshl_add_u32 v50, v48, 4, v50
    s_mul_i32 s62, s{sW}, {112*3584}
    s_lshl_b32 s{sT0}, s{sRHO}, 8
    s_add_u32 s62, s62, s{sT0}
    s_mul_i32 s63, s{sW}, {112*256}
    s_mov_b32 m0, s63
    """)
    for k in range(28):
        A('buffer_load_dwordx4 v50, s[16:19], s62 offen lds')
        if k < 27: A(f's_add_u32 s62, s62, {4*3584}\ns_add_u32 m0, m0, 1024')
    srd(A, 16, 38, 3584)
    A(f"""
    s_lshl_b32 s{sT1}, s{sW}, 6
    s_add_u32 s{sT0}, s{sT0}, s{sT1}
    v_lshlrev_b32 v50, 4, v49
    buffer_load_dwordx4 v[40:43], v50, s[16:19], s{sT0} offen
    v_bfe_u32 v51, v0, 2, 2                 ; r
    v_lshl_add_u32 v51, v49, 3, v51         ; 8g + r
    v_and_b32 v52, 3, v0                    ; cc
    v_lshlrev_b32 v53, 8, v51
    v_lshl_add_u32 v53, v52, 4, v53
    v_add_u32 v53, s{sT1}, v53
    v_add_u32 v54, 0xe000, v53
    s_waitcnt vmcnt(0)
    s_barrier
    """)
    for d in range(4):
        A(f'v_lshlrev_b32 v{B1+2*d}, 16, v{40+d}\nv_and_b32 v{B1+2*d+1}, 0xffff0000, v{40+d}')
    for t in range(14):
        for tt in range(2):
            for z in range(2):
                o = t * 8192 + z * 1024 + tt * 8
                base = 53 if t < 7 else 54
                A(f'ds_read_b64_tr_b16 {a(tt*56+t*4+2*z,2)}, v{base} offset:{o - (0 if t < 7 else 0xe000)}')
    barrier(A)
    srd(A, 16, 40, 1792 * 896)
    A(f"""
    s_mul_i32 s62, s{sRHO}, {128*896}
    s_add_u32 s62, s62, s63
    s_mov_b32 m0, s63
    """)
    for k in range(28):
        A(f'buffer_load_dwordx4 v{LANE16}, s[16:19], s62 offen lds')
        if k < 27: A(f's_add_u32 s62, s62, 1024\ns_add_u32 m0, m0, 1024')
    for r in range(40, 44): A(f'v_mov_b32 v{r}, v{ONE2}')
    for t in range(14):
        for tt in range(2):
            A(f'{MF} {v(CS+4*tt,4)}, {W1(tt,t)}, v[40:43], {"0" if t == 0 else v(CS+4*tt,4)}')
    A(f"""
    v_mul_u32_u24 v53, 896, v51
    s_mul_i32 s{sT0}, s{sW}, 224
    v_add_u32 v53, s{sT0}, v53
    v_lshl_add_u32 v55, v52, 3, v53
    v_lshl_add_u32 v53, v52, 4, v53
    v_add_u32 v54, {64*896}, v53
    v_add_u32 v56, {64*896}, v55
    s_waitcnt vmcnt(0)
    s_barrier
    """)
    for ks in range(4):
        for ct in range(7):
            for z in range(2):
                o = (ks & 1) * 32 * 896 + z * 4 * 896 + ((ct >> 1) * 64 + (ct & 1) * 8)
                base = (53 if ct < 6 else 55) + (ks >> 1)
                A(f'ds_read_b64_tr_b16 {a(112+(ct*4+ks)*4+2*z,2)}, v{base} offset:{o}')
    barrier(A)

    A('LM_job:')
    st.stamp(0); st.stamp(1)
    A(f"""
    s_mul_i32 s{sT0}, s{sSEG}, 28672
    s_mul_i32 s{sXA}, s{sLAYER}, {XBYTES}
    s_add_u32 s{sXA}, s{sXA}, s{sT0}
    s_add_u32 s{sXA}, s{sXA}, {XA}
    s_add_u32 s{sOUT}, s{sT0}, s{sRD}
    s_add_u32 s{sXSO}, s{sOUT}, {XS1}
    s_and_b32 s{sT0}, s{sN}, 1
    s_mul_i32 s{sPART}, s{sT0}, {14*28672}
    s_add_u32 s{sPART}, s{sPART}, s{sBIG}
    s_cmp_ge_u32 s{sRHO}, 14
    s_cbranch_scc1 LM_flag
    """)
    for k in range(1, 7): A(f's_add_u32 s{51+k}, s{sXA}, {k*4096}')
    ld = lambda k: f'buffer_load_dwordx4 {v(64+4*k,4)}, v{XW_}, s[8:11], s{sXA if k == 0 else 51+k} offen sc1'
    poll(A, [ld(0)], regs(64, 4), TMP)
    poll(A, [ld(k) for k in range(1, 7)], regs(68, 24), TMP)
    for k in range(7): A(f'ds_write_b128 v{XW_}, {v(64+4*k,4)} offset:{L_X + k*4096}')
    barrier(A)
    st.stamp(2)
    acc = lambda tt, mt: 48 + (tt * 2 + mt) * 4
    fr = lambda t, mt: 96 + ((t & 1) * 2 + mt) * 4
    rd = lambda t, mt: A(f'ds_read_b128 {v(fr(t,mt),4)}, v{XR} offset:{L_X + t*2048 + mt*512}')
    rd(0, 0); rd(0, 1)
    for k in range(7): A(f'ds_read_b128 {v(64+4*k,4)}, v{XST} offset:{L_X + k*2048}')
    A('v_mov_b32 v40, 0\nv_mov_b32 v41, 0')
    dots = []
    for r in range(64, 92):
        dots.append(f'v_dot2_f32_bf16 v40, v{r}, v{ONE2}, v40')
        dots.append(f'v_dot2_f32_bf16 v41, v{r}, v{r}, v41')
    for t in range(14):
        for mt in range(2):
            if t < 13: rd(t + 1, mt)
            for tt in range(2):
                A(f'{MF} {v(acc(tt,mt),4)}, {W1(tt,t)}, {v(fr(t,mt),4)}, {"0" if t == 0 else v(acc(tt,mt),4)}')
                if t >= 1:
                    for _ in range(2):
                        if dots: A(dots.pop(0))
        if t == 9:
            assert not dots
            xg(A, 'v_add_f32', 40, 42); xg(A, 'v_add_f32', 41, 42)
            A(f'ds_write_b64 v{STW}, v[40:41] offset:{L_ST}')
    barrier(A)
    for w in range(4): A(f'ds_read_b64 {v(64+2*w,2)}, v{STR} offset:{L_ST + w*128}')
    A(f's_mov_b32 s60, {fbits(1/448)}\ns_mov_b32 s61, {fbits(1e-5)}')
    c1 = -2 * math.sqrt(2 / math.pi) * math.log2(math.e)
    A(f's_mov_b32 s62, {fbits(c1*0.044715)}\nv_mov_b32 v42, {fbits(c1)}')
    for mt in range(2):
        S, Q, RS, NM = 64 + 2 * mt, 65 + 2 * mt, 72 + 2 * mt, 73 + 2 * mt
        A(f"""
        v_add_f32 v{S}, v{S}, v{S+4}
        v_add_f32 v{Q}, v{Q}, v{Q+4}
        v_mul_f32 v{S}, s60, v{S}
        v_mul_f32 v{Q}, s60, v{Q}
        v_fma_f32 v{Q}, -v{S}, v{S}, v{Q}
        v_max_f32 v{Q}, 0, v{Q}
        v_add_f32 v{RS}, s61, v{Q}
        v_rsq_f32 v{RS}, v{RS}
        v_mul_f32 v{Q}, v{Q}, v{RS}
        v_fma_f32 v{Q}, v{Q}, v{RS}, s61
        v_rsq_f32 v{Q}, v{Q}
        v_mul_f32 v{RS}, v{RS}, v{Q}
        v_mul_f32 v{NM}, -v{S}, v{RS}
        """)
    for mt in range(2):
        RS, NM = 72 + 2 * mt, 73 + 2 * mt
        el = [(acc(tt, mt) + r, 80 + tt * 4 + r, tt * 4 + r) for tt in range(2) for r in range(4)]
        for x, t, k in el: A(f'v_fma_f32 v{t}, v{NM}, v{CS+k}, v{B1+k}')
        for x, t, k in el: A(f'v_fma_f32 v{x}, v{x}, v{RS}, v{t}')
        for x, t, k in el: A(f'v_mul_f32 v{t}, v{x}, v{x}')
        for x, t, k in el: A(f'v_fma_f32 v{t}, v{t}, s62, v42')
        for x, t, k in el: A(f'v_mul_f32 v{t}, v{t}, v{x}')
        for x, t, k in el: A(f'v_exp_f32 v{t}, v{t}')
        for x, t, k in el: A(f'v_add_f32 v{t}, 1.0, v{t}')
        for x, t, k in el: A(f'v_rcp_f32 v{t}, v{t}')
        for x, t, k in el: A(f'v_mul_f32 v{x}, v{x}, v{t}')
        o = 88 + 4 * mt
        for tt in range(2):
            for p in range(2): A(f'v_cvt_pk_bf16_f32 v{o+2*tt+p}, v{acc(tt,mt)+2*p}, v{acc(tt,mt)+2*p+1}')
        A(f'ds_write_b128 v{HW_}, {v(o,4)} offset:{L_H + mt*1024}')
    barrier(A)
    st.stamp(3)
    hf = lambda ks, mt: 48 + (mt * 4 + ks) * 4
    for mt in range(2):
        for ks in range(4): A(f'ds_read_b128 {v(hf(ks,mt),4)}, v{LANE16} offset:{L_H + ks*2048 + mt*1024}')
    A(f's_mul_i32 s{sT0}, s{sRHO}, 28672\ns_add_u32 s52, s{sPART}, s{sT0}\ns_add_u32 s53, s52, 14336')
    ac2 = lambda ct, mt: 112 + (mt * 7 + ct) * 4
    pend = []
    def flush_one(ct, mt):
        o = 80 + ((mt * 4 + (ct >> 1)) & 3) * 4
        if ct == 6:
            for p in range(2): A(f'v_cvt_pk_bf16_f32 v{o+p}, v{ac2(ct,mt)+2*p}, v{ac2(ct,mt)+2*p+1}')
            A(f'buffer_store_dwordx2 {v(o,2)}, v{P8}, s[8:11], s{52+mt} offen offset:192')
        else:
            for tt in range(2):
                for p in range(2): A(f'v_cvt_pk_bf16_f32 v{o+2*tt+p}, v{ac2(ct-1+tt,mt)+2*p}, v{ac2(ct-1+tt,mt)+2*p+1}')
            A(f'buffer_store_dwordx4 {v(o,4)}, v{P16}, s[8:11], s{52+mt} offen offset:{(ct>>1)*64}')
    order = [(ct, mt) for mt in range(2) for ct in range(7)]
    for i, (ct, mt) in enumerate(order):
        for ks in range(4):
            A(f'{MF} {v(ac2(ct,mt),4)}, {W2(ct,ks)}, {v(hf(ks,mt),4)}, {"0" if ks == 0 else v(ac2(ct,mt),4)}')
        if i >= 2:
            c2, m2 = order[i - 2]
            if c2 & 1 or c2 == 6: flush_one(c2, m2)
    for c2, m2 in order[-2:]:
        if c2 & 1 or c2 == 6: flush_one(c2, m2)
    A(f"""
    LM_flag:
    s_waitcnt vmcnt(0)
    v_mov_b32 v{TMP}, s{sN}
    s_mov_b64 exec, 1
    buffer_store_dword v{TMP}, off, s[8:11], s{sFLW}
    s_mov_b64 exec, s[{sM56}:{sM56+1}]
    """)
    st.stamp(4)
    poll(A, [f'buffer_load_dwordx2 v[44:45], v{RESA}, s[8:11], s{sXA} offen sc1'], [44, 45], TMP)
    A('s_mov_b64 exec, -1\nv_mov_b32 v40, 0\nv_mov_b32 v41, 0')
    poll(A, [f'buffer_load_dword v{TMP}, v{LANE4}, s[8:11], s{sFLR} offen sc1'], None, None, cmp=f'v_cmp_gt_i32 vcc, s{sN}, v{TMP}')
    st.stamp(5)
    A(f's_mov_b64 exec, s[{sM56}:{sM56+1}]\ns_add_u32 s{sT0}, s{sPART}, s{sRD}')
    for c in range(14):
        A(f'buffer_load_dwordx2 {v(64+2*c,2)}, v{LANE8}, s[8:11], s{sT0} offen sc1')
        if c < 13: A(f's_add_u32 s{sT0}, s{sT0}, 28672')
    X = 48
    first = True
    for src in [44] + [64 + 2 * c for c in range(14)]:
        for k in range(4):
            c = f'v{B2+k}' if first else f'v{X+k}'
            A(f'v_dot2_f32_bf16 v{X+k}, v{src+(k>>1)}, v{SELHI if k & 1 else SELLO}, {c}')
        first = False
    A(f"""
    v_cvt_pk_bf16_f32 v52, v{X}, v{X+1}
    v_cvt_pk_bf16_f32 v53, v{X+2}, v{X+3}
    s_cmp_eq_u32 s{sLAYER}, 0
    s_cbranch_scc1 LM_ln
    buffer_store_dwordx2 v[52:53], v{LANE8}, s[12:15], s{sOUT} offen
    s_branch LM_next
    LM_ln:
    v_min_u32 v52, -2, v52
    v_min_u32 v53, -2, v53
    buffer_store_dwordx2 v[52:53], v{LANE8}, s[12:15], s{sOUT} offen sc1
    v_add_f32 v40, v{X}, v{X+1}
    v_mul_f32 v41, v{X}, v{X}
    v_add_f32 v40, v40, v{X+2}
    v_fmac_f32 v41, v{X+1}, v{X+1}
    v_add_f32 v40, v40, v{X+3}
    v_fmac_f32 v41, v{X+2}, v{X+2}
    v_fmac_f32 v41, v{X+3}, v{X+3}
    s_mov_b64 exec, -1
    """)
    wavesum(A, [40, 41], 42)
    A(f'ds_write_b64 v{ST2W}, v[40:41] offset:{L_ST2}')
    barrier(A)
    A(f"""
    ds_read_b64 v[40:41], v{ST2R} offset:{L_ST2}
    ds_read_b64 v[42:43], v{ST2R} offset:{L_ST2+16}
    s_mov_b32 s60, {fbits(1/448)}
    s_mov_b32 s61, {fbits(1e-5)}
    v_add_f32 v40, v40, v42
    v_add_f32 v41, v41, v43
    v_mul_f32 v40, s60, v40
    v_mul_f32 v41, s60, v41
    v_fma_f32 v41, -v40, v40, v41
    v_max_f32 v41, 0, v41
    v_add_f32 v41, s61, v41
    v_rsq_f32 v41, v41
    """)
    for k in range(4): A(f'v_sub_f32 v{X+k}, v{X+k}, v40')
    for k in range(4): A(f'v_mul_f32 v{X+k}, v{X+k}, v41')
    A(f"""
    v_cvt_pk_bf16_f32 v54, v{X}, v{X+1}
    v_cvt_pk_bf16_f32 v55, v{X+2}, v{X+3}
    v_min_u32 v54, -2, v54
    v_min_u32 v55, -2, v55
    s_mov_b64 exec, s[{sM56}:{sM56+1}]
    buffer_store_dwordx2 v[54:55], v{LANE8}, s[8:11], s{sXSO} offen sc1
    LM_next:
    s_mov_b64 exec, -1
    """)
    st.stamp(6)
    st.flush(7, TMP)
    A(f"""
    s_add_u32 s{sSEG}, s{sSEG}, 2
    s_add_u32 s{sN}, s{sN}, 1
    s_nop 7
    s_cmp_lt_u32 s{sSEG}, {3 if 'one' in opts else 64}
    s_cbranch_scc1 LM_job
    s_branch Lend
    """)
```

```python
from asmlib import *
from layout import *
import math, struct

def fbits(x): return '0x%08x' % struct.unpack('<I', struct.pack('<f', x))[0]

def srd(A, d, base, nbytes, add=0):
    if add:
        A(f's_add_u32 s{d}, s{base}, {add}\ns_addc_u32 s{d+1}, s{base+1}, 0')
    else:
        A(f's_mov_b32 s{d}, s{base}\ns_mov_b32 s{d+1}, s{base+1}')
    A(f's_mov_b32 s{d+2}, {nbytes}\ns_mov_b32 s{d+3}, 0x20000')

def red8(A, op, r, t):
    for m in ('quad_perm:[1,0,3,2]', 'quad_perm:[2,3,0,1]', 'row_half_mirror'):
        A(f'{op}_dpp {v(r)}, {v(r)}, {v(r)} {m} row_mask:0xf bank_mask:0xf')

def gen_prep(A):
    WSZ = 448 * 8192
    A(f"""
    s_cmp_ge_u32 s2, 256
    s_cbranch_scc1 Lp_end
    s_load_dwordx8 s[4:11], s[0:1], 0
    s_load_dwordx4 s[12:15], s[0:1], 32
    s_load_dwordx2 s[16:17], s[0:1], 112
    v_lshrrev_b32 v2, 6, v0
    v_and_b32 v1, 63, v0
    v_readfirstlane_b32 s20, v2
    s_and_b32 s21, s2, 7
    s_lshr_b32 s22, s2, 3
    v_lshlrev_b32 v6, 4, v0
    v_mov_b32 v8, -1
    v_mov_b32 v9, -1
    v_mov_b32 v10, -1
    v_mov_b32 v11, -1
    s_lshl_b32 s23, s2, 12
    s_add_u32 s23, s23, {CLR0}
    s_waitcnt lgkmcnt(0)
    """)
    srd(A, 24, 16, WS_USED)
    def clears():
        for k in range(CLR_PER_THREAD):
            A(f'buffer_store_dwordx4 v[8:11], v6, s[24:27], s23 offen sc1')
            if k + 1 < CLR_PER_THREAD: A(f's_add_u32 s23, s23, {256*4096}')
    A(f"""
    s_cmp_ge_u32 s22, 28
    s_cbranch_scc1 Lp_misc
    s_mul_i32 s40, s22, 37
    s_lshr_b32 s40, s40, 8          ; slot/7
    s_mul_i32 s41, s40, 7
    s_sub_u32 s41, s22, s41         ; b
    s_lshl_b32 s42, s21, 2
    s_add_u32 s42, s42, s40         ; pair 0..31
    s_and_b32 s43, s42, 1           ; mat
    s_lshr_b32 s42, s42, 1          ; h
    s_cmp_eq_u32 s43, 0
    s_cselect_b32 s28, s10, s12
    s_cselect_b32 s29, s11, s13
    s_mov_b32 s30, {WSZ}
    s_mov_b32 s31, 0x20000
    s_cselect_b32 s32, s8, s14
    s_cselect_b32 s33, s9, s15
    s_mov_b32 s34, {WSZ}
    s_mov_b32 s35, 0x20000
    v_lshrrev_b32 v2, 5, v1
    v_and_b32 v3, 31, v1
    v_xor_b32 v3, v3, v2
    v_lshlrev_b32 v3, 4, v3
    v_lshl_add_u32 v3, v2, 13, v3
    s_lshl_b32 s44, s42, 9          ; h*512
    s_cmp_eq_u32 s43, 0
    s_cbranch_scc0 Lp_colB
    """)
    A(f"""
    s_and_b32 s45, s20, 1
    s_lshl_b32 s45, s45, 7
    v_xor_b32 v4, s45, v3
    s_lshl_b32 s46, s41, 6
    s_lshl_b32 s47, s20, 4
    s_add_u32 s46, s46, s47
    s_lshl_b32 s46, s46, 13
    s_add_u32 s46, s46, s44         ; (64b+16w)*8192 + h*512
    s_lshl_b32 s47, s20, 13
    s_mov_b32 m0, s47
    """)
    for k in range(8):
        xc = ((2 * (k & 1)) | ((k >> 2) << 2)) * 16
        A(f'v_xor_b32 v5, {xc}, v4')
        A(f'buffer_load_dwordx4 v5, s[32:35], s46 offen lds')
        if k < 7: A(f's_add_u32 s46, s46, 16384\ns_add_u32 m0, m0, 1024')
    A(f"""
    s_mul_i32 s48, s42, 28
    s_lshl_b32 s49, s41, 2
    s_add_u32 s48, s48, s49
    s_mul_i32 s48, s48, 14336
    s_add_u32 s48, s48, {WA}
    s_mov_b32 s49, 14336
    s_mov_b32 s50, {fbits(256 ** -0.5 * math.log2(math.e))}
    s_branch Lp_rows
    Lp_colB:
    v_lshrrev_b32 v2, 3, v1
    v_mul_u32_u24 v2, 896, v2
    v_and_b32 v4, 7, v1
    v_bfe_u32 v5, v1, 4, 1
    v_lshlrev_b32 v5, 1, v5
    v_xor_b32 v4, v4, v5
    v_xor_b32 v5, 4, v4
    v_lshl_add_u32 v4, v4, 4, v2
    v_lshl_add_u32 v5, v5, 4, v2
    s_mul_i32 s46, s42, 229376
    s_mul_i32 s47, s20, {64*896}
    s_add_u32 s46, s46, s47
    s_lshl_b32 s47, s41, 7
    s_add_u32 s46, s46, s47
    s_lshl_b32 s47, s20, 13
    s_mov_b32 m0, s47
    """)
    for k in range(8):
        A(f'buffer_load_dwordx4 v{4 + (k & 1)}, s[32:35], s46 offen lds')
        if k < 7: A(f's_add_u32 s46, s46, {8*896}\ns_add_u32 m0, m0, 1024')
    A(f"""
    s_lshl_b32 s48, s41, 6
    s_add_u32 s48, s48, s42
    s_mul_i32 s48, s48, 14336
    s_add_u32 s48, s48, {WB}
    s_mov_b32 s49, {16*14336}
    s_mov_b32 s50, 1.0
    Lp_rows:
    s_lshl_b32 s51, s20, 18
    s_add_u32 s51, s51, s44         ; w*32*8192 + h*512
    s_lshl_b32 s52, s20, 15
    s_add_u32 s52, s52, 32768
    s_lshl_b32 s53, s20, 10
    s_add_u32 s48, s48, s53         ; + t*1024
    """)
    def panel(slot):
        A(f's_add_u32 m0, s52, {slot*16384}\ns_mov_b32 s46, s51')
        for i in range(16):
            xc = ((2 * (i & 1)) | ((i >> 2) << 2)) * 16
            A(f'v_xor_b32 v5, {xc}, v3')
            A(f'buffer_load_dwordx4 v5, s[28:31], s46 offen lds')
            if i < 15: A(f's_add_u32 s46, s46, 16384\ns_add_u32 m0, m0, 1024')
        A(f's_add_u32 s51, s51, {4*32*8192}')
    panel(0); panel(1)
    clears()
    A("""
    v_and_b32 v2, 15, v1
    v_lshrrev_b32 v4, 4, v1
    v_xor_b32 v5, v2, v4
    v_lshlrev_b32 v5, 4, v5
    v_lshrrev_b32 v7, 2, v2
    v_lshlrev_b32 v7, 3, v7
    v_and_b32 v2, 3, v2
    v_add_u32 v7, v7, v2
    v_lshl_add_u32 v12, v7, 9, v5
    v_xor_b32 v13, 64, v12
    v_xor_b32 v14, 128, v12
    v_xor_b32 v15, 192, v12
    v_lshlrev_b32 v6, 4, v1
    """)
    A(f"""
    s_waitcnt vmcnt({32 + CLR_PER_THREAD})
    s_barrier
    s_cmp_eq_u32 s43, 0
    s_cbranch_scc0 Lp_rdB
    """)
    C = lambda tl, es: 64 + (tl * 8 + es) * 4
    for es in range(8):
        for tl in range(4):
            A(f'ds_read_b128 {v(C(tl,es),4)}, v{12 + (es & 3)} offset:{(tl>>1)*16384 + (tl&1)*2048 + (es>>2)*256}')
    A("""
    s_branch Lp_go
    Lp_rdB:
    v_lshrrev_b32 v4, 4, v1
    v_bfe_u32 v5, v1, 2, 2
    v_lshl_add_u32 v7, v4, 3, v5
    v_lshlrev_b32 v7, 7, v7
    v_and_b32 v2, 3, v1
    v_lshl_add_u32 v7, v2, 3, v7
    v_and_b32 v4, 1, v4
    v_lshrrev_b32 v5, 1, v5
    v_lshl_add_u32 v4, v4, 1, v5
    v_lshl_add_u32 v16, v4, 5, v7
    v_xor_b32 v17, 32, v16
    v_xor_b32 v18, 64, v16
    v_xor_b32 v19, 96, v16
    """)
    for es in range(8):
        for tl in range(4):
            for z in range(2):
                A(f'ds_read_b64_tr_b16 {v(C(tl,es)+2*z,2)}, v{16+tl} offset:{es*4096 + z*512}')
    A("""
    Lp_go:
    s_waitcnt lgkmcnt(0)
    v_add_u32 v12, s52, v12
    v_add_u32 v13, s52, v13
    v_add_u32 v14, s52, v14
    v_add_u32 v15, s52, v15
    """)
    acc = lambda z, tl: 32 + (z * 4 + tl) * 4
    waits = [16 + CLR_PER_THREAD, CLR_PER_THREAD + 20, 24, 8]
    for ch in range(4):
        slot = ch & 1
        if ch == 3:
            A('s_cmp_ge_u32 s20, 2\ns_cbranch_scc1 Lp_end')
        A(f's_waitcnt vmcnt({waits[ch]})')
        F = lambda es, z: 192 + (es * 2 + z) * 4
        for es in range(8):
            for z in range(2):
                A(f'ds_read_b128 {v(F(es,z),4)}, v{12 + (es & 3)} offset:{slot*16384 + z*2048 + (es>>2)*256}')
        for es in range(8):
            for z in range(2):
                for tl in range(4):
                    c = '0' if es == 0 else v(acc(z, tl), 4)
                    A(f'v_mfma_f32_16x16x32_bf16 {v(acc(z,tl),4)}, {v(F(es,z),4)}, {v(C(tl,es),4)}, {c}')
        if ch < 2: panel(slot)
        A('s_mov_b32 s54, s48')
        for tl in range(4):
            for z in range(2):
                for r in range(4): A(f'v_mul_f32 v{acc(z,tl)+r}, s50, v{acc(z,tl)+r}')
            o = 20 + (tl & 1) * 4
            for z in range(2):
                for p in range(2):
                    A(f'v_cvt_pk_bf16_f32 v{o+2*z+p}, v{acc(z,tl)+2*p}, v{acc(z,tl)+2*p+1}')
            A(f'buffer_store_dwordx4 {v(o,4)}, v6, s[24:27], s54 offen')
            if tl < 3: A('s_add_u32 s54, s54, s49')
        A('s_add_u32 s48, s48, 4096')
    A('s_branch Lp_end')
    A('Lp_misc:')
    srd(A, 28, 4, XBYTES)
    srd(A, 32, 6, 7168)
    A(f"""
    s_sub_u32 s40, s22, 28
    s_lshl_b32 s40, s40, 3
    s_add_u32 s40, s40, s21         ; idx 0..31
    s_lshl_b32 s41, s40, 2
    s_add_u32 s41, s41, s20
    s_mul_i32 s41, s41, {16*896}
    v_lshrrev_b32 v2, 3, v1
    v_mul_u32_u24 v2, 896, v2
    v_and_b32 v3, 7, v1
    v_lshl_add_u32 v3, v3, 4, v2
    s_add_u32 s42, s41, {8*896}
    """)
    for grp in range(2):
        for tp in range(7):
            A(f'buffer_load_dwordx4 {v(16 + grp*28 + tp*4, 4)}, v3, s[28:31], s{41+grp} offen offset:{tp*128}')
    clears()
    A(f's_mov_b32 s43, 0xffff0000\ns_mov_b32 s44, {fbits(1/448)}\ns_mov_b32 s45, {fbits(1e-5)}')
    for grp in range(2):
        src = 16 + grp * 28; X = 80
        for d in range(28):
            A(f'v_lshlrev_b32 v{X+2*d}, 16, v{src+d}\nv_and_b32 v{X+2*d+1}, s43, v{src+d}')
        A(f'v_pk_add_f32 v[4:5], {v(X,2)}, {v(X+2,2)}')
        for d in range(2, 28): A(f'v_pk_add_f32 v[4:5], v[4:5], {v(X+2*d,2)}')
        A('v_add_f32 v4, v4, v5')
        red8(A, 'v_add_f32', 4, 5)
        A('v_mul_f32 v4, s44, v4')
        for d in range(28): A(f'v_pk_add_f32 {v(X+2*d,2)}, {v(X+2*d,2)}, v[4:5] op_sel_hi:[1,0] neg_lo:[0,1] neg_hi:[0,1]')
        A(f'v_pk_mul_f32 v[12:13], {v(X,2)}, {v(X,2)}')
        for d in range(1, 28): A(f'v_pk_fma_f32 v[12:13], {v(X+2*d,2)}, {v(X+2*d,2)}, v[12:13]')
        A('v_add_f32 v12, v12, v13')
        red8(A, 'v_add_f32', 12, 13)
        A('v_mov_b32 v13, s45\nv_fmac_f32 v13, s44, v12\nv_rsq_f32 v12, v13')
        for d in range(28):
            A(f'v_pk_mul_f32 {v(X+2*d,2)}, {v(X+2*d,2)}, v[12:13] op_sel_hi:[1,0]')
            A(f'v_cvt_pk_bf16_f32 v{src+d}, v{X+2*d}, v{X+2*d+1}')
            A(f'v_min_u32 v{src+d}, -2, v{src+d}')
        A(f's_add_u32 s46, s{41+grp}, {XS0}')
        for tp in range(7):
            A(f'buffer_store_dwordx4 {v(src + tp*4, 4)}, v3, s[24:27], s46 offen offset:{tp*128}')
    A(f"""
    s_cmp_lg_u32 s40, 0
    s_cbranch_scc1 Lp_end
    v_bfe_u32 v2, v1, 2, 3
    v_mul_u32_u24 v2, 224, v2
    v_and_b32 v4, 3, v1
    v_lshl_add_u32 v2, v4, 1, v2
    v_lshrrev_b32 v4, 5, v1
    v_add_u32 v2, v2, v4
    v_lshlrev_b32 v2, 2, v2
    s_lshl_b32 s41, s20, 5
    v_lshlrev_b32 v4, 2, v0
    s_mov_b32 s42, 4096
    s_mov_b32 s43, 8192
    s_mov_b32 s44, 12288
    """)
    for k in range(7):
        A(f'buffer_load_dword v{16+k}, v2, s[32:35], s41 offen offset:{k*128}')
    for k in range(7):
        A(f'v_min_u32 v{16+k}, -2, v{16+k}')
        so = ('0', 's42')[k >> 2]; so2 = ('s43', 's44')[k >> 2]
        A(f'buffer_store_dword v{16+k}, v4, s[24:27], {so} offen offset:{(k&3)*1024}')
        A(f'buffer_store_dword v{16+k}, v4, s[24:27], {so2} offen offset:{(k&3)*1024}')
    A('Lp_end:\ns_endpgm')
```

```python
import sys
sys.path.insert(0, 'gen')
from asmlib import *
from layout import *
import prep

NAME = 'interleave_layers__memory_aug_recurrent_mem_tr__mixer_channel_mlp__prompt'
ref = open(f'cdna_kernels/{NAME}.s.ref').read().split('\n')
head = [l for l in ref if l.startswith(';   offset') or l.startswith('; Kernarg')]

def kd(name, vg, acc, sg=102):
    return f""".amdhsa_kernel {name}
  .amdhsa_next_free_vgpr {vg}
  .amdhsa_next_free_sgpr {sg}
  .amdhsa_accum_offset {acc}
  .amdhsa_group_segment_fixed_size 0
  .amdhsa_kernarg_size 120
  .amdhsa_user_sgpr_count 2
  .amdhsa_user_sgpr_kernarg_segment_ptr 1
  .amdhsa_system_sgpr_workgroup_id_x 1
  .amdhsa_float_denorm_mode_32 3
.end_amdhsa_kernel"""

def build(out, kernels):
    txt = list(head)
    for name, lds, gen, vg, acc in kernels:
        txt.append(f'; @launch kernel={name} grid=(256,1,1) block=(256,1,1) lds={lds}')
    txt.append('.amdgcn_target "amdgcn-amd-amdhsa--gfx950"\n.text')
    for name, lds, gen, vg, acc in kernels:
        A = Asm(); gen(A)
        txt.append(f'.globl {name}\n.p2align 8\n.type {name},@function\n{name}:')
        txt.append(A.finish())
    txt.append('.section .rodata,"a"')
    for name, lds, gen, vg, acc in kernels:
        txt.append('.p2align 6\n' + kd(name, vg, acc))
    open(out, 'w').write('\n'.join(txt) + '\n')

if __name__ == '__main__':
    ks = [('prep_kernel', 163840, lambda A: prep.gen_prep(A, sys.argv[3:]), 256, 256)]
    which = sys.argv[1] if len(sys.argv) > 1 else 'all'
    if which != 'prep':
        import mainK
        opts = sys.argv[3:]
        ks.append(('main_kernel', mainK.LDS_BYTES, lambda A: mainK.gen_main(A, opts), 512, 256))
    build(sys.argv[2] if len(sys.argv) > 2 else 'k.s', ks)
```

```python
import re

MTIME = True
TRANS = ('v_exp_f32', 'v_log_f32', 'v_rcp_f32', 'v_rsq_f32', 'v_sqrt_f32', 'v_sin_f32', 'v_cos_f32')
REG_RE = re.compile(r'^(-|abs\(|\|)*([vas])(\d+|\[(\d+):(\d+)\])\)?\|?$')

def regs_of(tok):
    tok = tok.strip()
    if tok in ('vcc', 'exec', 'm0', 'scc'):
        return [tok]
    if tok in ('vcc_lo', 'vcc_hi'): return ['vcc']
    if tok in ('exec_lo', 'exec_hi'): return ['exec']
    m = REG_RE.match(tok)
    if not m: return []
    k = m.group(2)
    if m.group(4) is not None:
        return [f'{k}{i}' for i in range(int(m.group(4)), int(m.group(5)) + 1)]
    return [f'{k}{int(m.group(3))}']

def v(i, n=1): return f'v{i}' if n == 1 else f'v[{i}:{i+n-1}]'
def a(i, n=1): return f'a{i}' if n == 1 else f'a[{i}:{i+n-1}]'
def s(i, n=1): return f's{i}' if n == 1 else f's[{i}:{i+n-1}]'

class Ins:
    __slots__ = ('text', 'op', 'defs', 'uses', 'kind', 'mA', 'mC', 'passes', 'target', 'wide', 'dpp', 'ops')
    def __init__(self, text):
        self.text = text
        body = text.split(';')[0].strip()
        parts = body.split(None, 1)
        op = self.op = parts[0]
        rest = parts[1] if len(parts) > 1 else ''
        toks = [t.strip() for t in rest.split(',')] if rest else []
        mods = ''
        if toks:
            last = toks[-1].split(None, 1)
            m = re.search(r'\s(offen|offset|off\b|op_sel|neg_|row_|quad_perm|bound_ctrl|cbsz|abid|blgp|bitop3|sc0|sc1|nt\b|lds\b|glc|clamp|mul:|div:|dst_sel|src0_sel|src1_sel)', ' ' + rest)
            if m and m.group(1) != 'off':
                cut = m.start()
                mods = (' ' + rest)[cut:]
                toks = [t.strip() for t in (' ' + rest)[:cut].split(',') if t.strip()]
            else:
                toks = [t.split()[0] if t.split() else t for t in toks]
                mods = rest
        self.ops = toks
        R = [regs_of(t) for t in toks]
        flat = lambda L: [x for l in L for x in l]
        self.defs = []; self.uses = []; self.kind = 'other'
        self.mA = []; self.mC = []; self.passes = 0; self.target = None; self.wide = False
        self.dpp = ('_dpp' in op) or ('row_' in mods) or ('quad_perm' in mods)
        if op.startswith('v_mfma') or op.startswith('v_smfmac'):
            self.kind = 'mfma'
            self.passes = 8 if '32x32' in op else 4
            self.defs = R[0]
            if op.startswith('v_smfmac'):
                self.mA = flat(R[1:4]); self.mC = R[0]
            else:
                self.mA = flat(R[1:3]); self.mC = R[3]
            self.uses = self.mA + self.mC
        elif op.startswith('v_'):
            self.kind = 'valu'
            if 'permlane' in op and 'swap' in op:
                self.defs = flat(R[:2]); self.uses = flat(R[:2])
            elif op.startswith('v_add_co') or op.startswith('v_sub_co') or op.startswith('v_addc_co') or op.startswith('v_mad_u64'):
                self.defs = flat(R[:2]); self.uses = flat(R[2:])
            else:
                self.defs = R[0]; self.uses = flat(R[1:])
                if op.startswith(('v_fmac', 'v_dot2c', 'v_pk_fmac', 'v_writelane')) or self.dpp or 'dst_sel' in mods:
                    self.uses = self.uses + R[0]
        elif op.startswith('ds_'):
            self.kind = 'ds'
            if op.startswith(('ds_read', 'ds_bpermute', 'ds_permute', 'ds_swizzle')) or '_rtn' in op:
                self.defs = R[0]; self.uses = flat(R[1:])
            else:
                self.uses = flat(R)
        elif op.startswith(('buffer_', 'global_')):
            self.kind = 'vmem'
            islds = bool(re.search(r'\blds\b', mods)) or '_lds_' in op
            if op in ('buffer_wbl2', 'buffer_inv'):
                pass
            elif 'load' in op and not islds:
                self.defs = R[0]; self.uses = flat(R[1:])
            elif 'atomic' in op and 'sc0' in mods:
                self.defs = R[0]; self.uses = flat(R) if op.startswith('buffer') else flat(R[1:])
            else:
                self.uses = flat(R)
                if islds: self.uses = self.uses + ['m0']
                if 'store' in op and ('x4' in op or 'x3' in op):
                    self.wide = R[0] if op.startswith('buffer') else R[1]
        elif op.startswith('s_load') or op in ('s_memtime', 's_memrealtime'):
            self.kind = 'smem'; self.defs = R[0]; self.uses = flat(R[1:])
        elif op.startswith('s_cbranch') or op == 's_branch':
            self.kind = 'branch'; self.target = toks[0]
        elif op in ('s_waitcnt', 's_nop', 's_barrier', 's_endpgm', 's_sleep', 's_setprio'):
            self.kind = op
        elif op.startswith('s_'):
            self.kind = 'salu'
            if op.startswith(('s_cmp', 's_bitcmp')):
                self.uses = flat(R)
            else:
                self.defs = R[0]; self.uses = flat(R[1:])
                if 'saveexec' in op: self.defs = self.defs + ['exec']
        else:
            raise ValueError('unknown op: ' + text)

class State:
    def __init__(self):
        self.ev = {}
        self.vm = {}
        self.lg = {}
        self.sm = set()
        self.smem_out = False
    def copy(self):
        t = State(); t.ev = dict(self.ev); t.vm = dict(self.vm); t.lg = dict(self.lg); t.sm = set(self.sm); t.smem_out = self.smem_out
        return t
    def merge(self, o):
        self.ev.pop(('lastm', 0), None)
        o = o.copy(); o.ev.pop(('lastm', 0), None)
        for k, x in o.ev.items():
            if k not in self.ev or x[0] < self.ev[k][0]: self.ev[k] = x
        for d, e in ((self.vm, o.vm), (self.lg, o.lg)):
            for k, x in e.items():
                d[k] = min(d.get(k, x), x)
        self.sm |= o.sm; self.smem_out |= o.smem_out
    def age(self, n):
        self.ev = {k: (x[0] + n, x[1]) for k, x in self.ev.items() if x[0] + n < 24}

class Asm:
    def __init__(self):
        self.items = []
        self.uid = 0
    def __call__(self, text):
        for line in text.split('\n'):
            t = line.strip()
            if not t or t.startswith(';'): continue
            if re.match(r'^[\w.$]+:$', t): self.items.append(('label', t[:-1]))
            elif t.startswith('.'): self.items.append(('raw', t))
            else: self.items.append(('ins', Ins(t)))
    def raw(self, text): self.items.append(('raw', text))
    def label(self, name): self.items.append(('label', name))
    def newlabel(self, base):
        self.uid += 1
        return f'L{base}_{self.uid}'
    def reset(self): self.items.append(('reset', None))

    def need(self, st, I):
        n = 0
        def req(kind, regs, ws):
            nonlocal n
            for r in regs:
                e = st.ev.get((kind, r))
                if e is not None: n = max(n, (ws(e[1]) if callable(ws) else ws) - e[0])
        vg = lambda L: [r for r in L if r[0] in 'va' and r != 'vcc']
        sg = lambda L: [r for r in L if (r[0] == 's' and r != 'scc') or r == 'vcc']
        if I.kind == 'mfma':
            req('valu', I.uses, 2)
            req('dot', I.uses, 3)
            req('mfma', I.mA, lambda x: x[0] + 4)
            for r in I.mC:
                e = st.ev.get(('mfma', r))
                if e is not None and not (e[1][1] == tuple(I.mC) and e[1][2] == I.op):
                    n = max(n, e[1][0] + 4 - e[0])
            if I.mC != I.defs:
                req('mfma', I.defs, lambda x: x[0] + 2)
        elif I.kind == 'valu':
            req('mfma', vg(I.uses) + vg(I.defs), lambda x: x[0] + 4)
            req('mfmaC', vg(I.defs), lambda x: x - 1)
            if not any(I.op.startswith(t) for t in TRANS):
                req('trans', vg(I.uses), 1)
            if 'permlane' in I.op or I.dpp: req('valu', vg(I.uses), 2)
            if I.op.startswith(('v_readlane', 'v_readfirstlane')): req('valu', vg(I.uses), 1)
            us = sg(I.uses)
            if I.op.startswith('v_cndmask') and len(I.ops) == 3: us = us + ['vcc']
            req('valus', us, 4 if I.op.startswith(('v_readlane', 'v_writelane')) else 2)
            req('wide', vg(I.defs), 2)
            req('opsel', vg(I.uses) + vg(I.defs), 1)
            if I.op.startswith('v_dot'): req('dot', [r for t in I.ops[1:3] for r in regs_of(t)], 3)
            else: req('dot', vg(I.uses) + vg(I.defs), 3)
        elif I.kind in ('vmem', 'ds'):
            req('mfma', vg(I.uses) + vg(I.defs), lambda x: x[0] + 4)
            req('dot', vg(I.uses), 3)
            if I.kind == 'vmem': req('valus', sg(I.uses), 5)
            req('wide', vg(I.defs), 1)
            if 'm0' in I.uses: req('salu', ['m0'], 1)
        return n

    def finish(self):
        out = []
        st = State(); alive = True
        pend = {}
        seen = set()
        for kind, it in self.items:
            if kind == 'raw':
                out.append(it); continue
            if kind == 'reset':
                st = State(); alive = True; continue
            if kind == 'label':
                seen.add(it)
                if it in pend:
                    if alive: st.merge(pend[it])
                    else: st = pend[it]
                elif not alive:
                    st = State()
                alive = True
                out.append(it + ':'); continue
            I = it
            if I.kind == 's_waitcnt':
                m = re.search(r'vmcnt\((\d+)\)', I.text)
                if m: st.vm = {r: c for r, c in st.vm.items() if c < int(m.group(1))}
                m = re.search(r'lgkmcnt\((\d+)\)', I.text)
                if m:
                    k = int(m.group(1))
                    if k == 0: st.lg = {}; st.sm = set(); st.smem_out = False
                    elif not st.smem_out: st.lg = {r: c for r, c in st.lg.items() if c < k}
            else:
                touched = I.uses + I.defs
                w = []
                tv = [r for r in touched if r in st.vm]
                if I.kind == 'vmem': tv = [r for r in I.uses if r in st.vm]
                if tv:
                    k = min(63, min(st.vm[r] for r in tv)); w.append(f'vmcnt({k})')
                    st.vm = {r: c for r, c in st.vm.items() if c < k}
                tl = [r for r in touched if r in st.lg]
                if I.kind == 'ds': tl = [r for r in I.uses if r in st.lg]
                ts = [r for r in touched if r in st.sm]
                if ts or (tl and st.smem_out):
                    w.append('lgkmcnt(0)'); st.lg = {}; st.sm = set(); st.smem_out = False
                elif tl:
                    k = min(15, min(st.lg[r] for r in tl)); w.append(f'lgkmcnt({k})')
                    st.lg = {r: c for r, c in st.lg.items() if c < k}
                if w:
                    k = len(out)
                    if I.kind == 'mfma':
                        while k > 0 and len(out) - k < 4 and re.match(r'\s+v_(?!mfma|smfmac)', out[k-1]): k -= 1
                        if not (k < len(out) and re.match(r'\s+v_(mfma|smfmac)', out[k-1])): k = len(out)
                    if k == len(out): st.age(1)
                    out.insert(k, '    s_waitcnt ' + ' '.join(w))
            n = self.need(st, I)
            while n > 0:
                k = min(n, 16)
                out.append(f'    s_nop {k-1}'); st.age(k); n -= k
            if I.kind == 'mfma' and MTIME:
                e = st.ev.get(('lastm', 0))
                if e is not None and e[0] + 1 < e[1]:
                    d = e[1] - e[0] - 1
                    st.ev = {k: ((x[0] + d, x[1]) if x[0] >= e[0] else x) for k, x in st.ev.items()}
            out.append('    ' + I.text)
            adv = 1
            if I.kind == 's_nop': adv = int(I.ops[0], 0) + 1
            st.age(adv)
            if I.kind == 'valu':
                tr = any(I.op.startswith(t) for t in TRANS)
                for r in I.defs:
                    if r[0] in 'va' and r != 'vcc':
                        st.ev[('valu', r)] = (0, None)
                        st.ev.pop(('mfma', r), None)
                        if I.op.startswith('v_dot'): st.ev[('dot', r)] = (0, None)
                        if tr: st.ev[('trans', r)] = (0, None)
                        else: st.ev.pop(('trans', r), None)
                        if 'dst_sel' in I.text or ('op_sel:' in I.text and not I.op.startswith('v_pk')): st.ev[('opsel', r)] = (0, None)
                    else:
                        st.ev[('valus', r)] = (0, None)
            elif I.kind == 'mfma':
                for r in I.defs: st.ev[('mfma', r)] = (0, (I.passes, tuple(I.defs), I.op))
                for r in I.mC: st.ev[('mfmaC', r)] = (0, I.passes)
                st.ev[('lastm', 0)] = (0, I.passes)
            elif I.kind == 'salu':
                for r in I.defs:
                    st.ev.pop(('valus', r), None)
                    if r == 'm0': st.ev[('salu', 'm0')] = (0, None)
            elif I.kind == 'vmem':
                st.vm = {r: c + 1 for r, c in st.vm.items()}
                for r in I.defs: st.vm[r] = 0
                if I.wide:
                    for r in I.wide: st.ev[('wide', r)] = (0, None)
            elif I.kind == 'ds':
                st.lg = {r: c + 1 for r, c in st.lg.items()}
                for r in I.defs: st.lg[r] = 0
            elif I.kind == 'smem':
                st.smem_out = True
                for r in I.defs: st.sm.add(r)
            elif I.kind == 'branch':
                if I.target not in seen:
                    if I.target in pend: pend[I.target].merge(st)
                    else: pend[I.target] = st.copy()
                if I.op == 's_branch': alive = False
            elif I.kind == 's_endpgm':
                alive = False
        return '\n'.join(out) + '\n'
```

```python
from asmlib import *
from layout import *
from common import *
from prep import srd, fbits

L_XS, L_MEM, L_RED1, L_RED2, L_RS = 0, 0, 8192, 12288, 20480
XS_A, XS_FLIP, PARK_A = 32768, 65536, 61440
RS_STRIDE = 1056
OOB = 0x40000000
(LANE16, XSG, XSW, XSR0, XSR1, IDX, MEM1, MEM2, PARK, RED1R, RED2W, RED2R, LANE4, RES, RESV, TMP,
 NATA, SW, SR) = range(1, 20)
SEL = 20
SO, ALA, STA, M01, STAT = 24, 25, 27, 28, 30
VV = lambda hh: 32 + 4 * hh
FR, ZACC, B3, B4 = 80, 64, 116, 88
sW, sXCC, sRANK, sLAYER, sTEAM, sH, sU, sJ, sSEG, sN, sTB, sBIG = range(20, 32)
sXS, sMEMR, sMEMW, sXA = 32, 33, 34, 35
sSW, sSC, sSR0, sSR1, sER, sSTR, sEW, sEC = 36, 37, 38, 39, 40, 41, 42, 43
sRES, sKX, sKM, sFL, sPW, sPC, sP01, sP23, sPM, sKM2 = 48, 49, 50, 51, 52, 53, 54, 55, 56, 57
sT0, sT1 = 58, 59
sMASK = lambda r: 60 + 2 * r
sLO8 = 68
sB = 71
sAM = lambda d: 92 + 2 * d
sPMW, sPMC = 16, 17
sLO32 = 100
sT2 = 18
sXD, sXX, sXL = 60, 61, 62
MF = 'v_mfma_f32_16x16x32_bf16'
SM = 'v_smfmac_f32_16x16x64_bf16'
DPP = 'row_mask:0xf bank_mask:0xf'

class AW:
    X = False
    @staticmethod
    def wa(tl, t, n=4): return a(tl * 56 + t * 4, n)
    @staticmethod
    def wb(hh, t, n=4):
        q = hh * 56 + t * 4
        return a(224 + q, n) if q < 32 else v(120 + q - 32, n)
class XW:
    X = True
    @staticmethod
    def wb(hh, t, n=4): return a(hh * 56 + t * 4, n)

def xs_read(A, dst, t, mt):
    A(f'ds_read_b128 {v(dst,4)}, v{XSR1 if t & 1 else XSR0} offset:{L_XS + (t>>1)*4096 + mt*2048}')

def cvt(A, d, src):
    A(f'v_cvt_pk_bf16_f32 v{d}, v{src}, v{src+1}\nv_cvt_pk_bf16_f32 v{d+1}, v{src+2}, v{src+3}')

def job_offsets(A, R):
    A(f"""
    s_mul_i32 s{sT0}, s{sSEG}, 28672
    s_mov_b32 s{sXS}, {XS1}
    s_cmp_eq_u32 s{sLAYER}, 0
    s_cselect_b32 s{sXS}, {XS0}, s{sXS}
    s_add_u32 s{sXS}, s{sXS}, s{sT0}
    """)
def kx_offset(R):
    o = f"""s_and_b32 s{sT0}, s{sN}, 1
    s_mul_i32 s{sKX}, s{sT0}, {16*28672}
    s_mul_i32 s{sT1}, s{sH}, 28672
    s_add_u32 s{sKX}, s{sKX}, s{sT1}
    s_add_u32 s{sKX}, s{sKX}, s{sBIG}""".split('\n')
    if not R.X: o += [f's_lshl_b32 s{sT1}, s{sB}, 12', f's_add_u32 s{sKX}, s{sKX}, s{sT1}']
    return o
def job_offsets2(R):
    o = []
    A = lambda t: o.extend(x.strip() for x in t.split('\n') if x.strip())
    A(f"""
    s_mul_i32 s{sT0}, s{sSEG}, 28672
    s_lshl_b32 s{sT1}, s{sJ}, 5
    s_add_u32 s{sRES}, s{sT0}, s{sT1}
    s_mul_i32 s{sXA}, s{sLAYER}, {XBYTES}
    s_add_u32 s{sXA}, s{sXA}, s{sT0}
    s_lshl_b32 s{sT1}, s{sJ}, 10
    s_add_u32 s{sXA}, s{sXA}, s{sT1}
    s_lshl_b32 s{sT1}, s{sW}, 8
    s_add_u32 s{sXA}, s{sXA}, s{sT1}
    s_add_u32 s{sXA}, s{sXA}, {XA}
    s_lshl_b32 s{sMEMR}, s{sSEG}, 14
    s_add_u32 s{sMEMR}, s{sMEMR}, s3
    s_lshl_b32 s{sT1}, s{sJ}, 8
    s_add_u32 s{sMEMW}, s{sMEMR}, s{sT1}
    s_add_u32 s{sMEMW}, s{sMEMW}, 16384
    s_and_b32 s{sT0}, s{sN}, 1
    s_mul_i32 s{sKM}, s{sT0}, {KM_SLOT}
    s_mul_i32 s{sT1}, s{sH}, 7168
    s_add_u32 s{sKM}, s{sKM}, s{sT1}
    s_add_u32 s{sKM}, s{sKM}, s{sTB}
    s_lshl_b32 s{sT2}, s{sT0}, 15
    s_add_u32 s{sT2}, s{sT2}, s{sBIG}
    s_add_u32 s{sT2}, s{sT2}, {B_EX}
    s_lshl_b32 s{sT1}, s{sW}, 13
    s_add_u32 s{sP01}, s{sT2}, s{sT1}
    s_add_u32 s{sP23}, s{sP01}, 4096
    s_mul_i32 s{sT0}, s{sT0}, {P_SLOT}
    s_add_u32 s{sT0}, s{sT0}, s{sTB}
    s_add_u32 s{sT0}, s{sT0}, {T_P}
    s_lshl_b32 s{sT1}, s{sW}, 12
    s_add_u32 s{sPM}, s{sT0}, s{sT1}
    """)
    if R.X:
        A(f"""
        s_lshl_b32 s{sT1}, s{sH}, 11
        s_add_u32 s{sPW}, s{sT2}, s{sT1}
        s_mov_b32 s{sPMW}, s{sT0}
        s_mov_b32 s{sT1}, {P_SLOT}
        s_bitcmp1_b32 s{sN}, 0
        s_cselect_b32 s{sT1}, {(1<<32) - P_SLOT}, s{sT1}
        s_add_u32 s{sPMC}, s{sPMW}, s{sT1}
        s_add_u32 s{sKM2}, s{sKM}, 4096
        """)
    else:
        A(f"""
        s_lshl_b32 s{sT1}, s{sB}, 10
        s_add_u32 s{sKM}, s{sKM}, s{sT1}
        """)
    A(f"""
    s_and_b32 s{sT0}, s{sN}, 3
    s_mul_i32 s{sT0}, s{sT0}, {SE_SLOT}
    s_add_u32 s{sT0}, s{sT0}, s{sTB}
    s_add_u32 s{sT0}, s{sT0}, {T_SE}
    s_add_u32 s{sT2}, s{sN}, 3
    s_and_b32 s{sT2}, s{sT2}, 3
    s_mul_i32 s{sT2}, s{sT2}, {SE_SLOT}
    s_add_u32 s{sT2}, s{sT2}, s{sTB}
    s_add_u32 s{sT2}, s{sT2}, {T_SE}
    s_lshl_b32 s{sT1}, s{sU}, 4
    s_add_u32 s{sT1}, s{sT1}, s{sH}
    s_lshl_b32 s{sT1}, s{sT1}, 8
    s_add_u32 s{sSW}, s{sT0}, s{sT1}
    s_add_u32 s{sSC}, s{sT2}, s{sT1}
    s_lshl_b32 s{sT1}, s{sW}, 10
    s_add_u32 s{sSR0}, s{sT0}, s{sT1}
    s_add_u32 s{sSR1}, s{sSR0}, 4096
    s_lshl_b32 s{sT1}, s{sW}, 11
    s_add_u32 s{sER}, s{sT0}, s{sT1}
    s_add_u32 s{sER}, s{sER}, 8192
    s_add_u32 s{sSTR}, s{sT0}, 16384
    """)
    if R.X:
        A(f's_mov_b32 s{sEW}, s{sT0}\ns_mov_b32 s{sEC}, s{sT2}')
    return o

XLD = lambda tp: f'buffer_load_dwordx4 {v(80+4*tp,4)}, v{XSG}, s[8:11], s{sXS} offen offset:{tp*128} sc1'
XWR = [f'ds_write_b128 v{XSW}, {v(80+4*tp,4)} offset:{tp*4096}' for tp in range(7)]
XLD2 = [f'buffer_load_dwordx4 {v(48+4*k,4)}, v{XSG}, s[8:11], s{sT2} offen offset:{k*256} sc1' for k in range(3)]
XWR2 = [f'ds_write_b128 v0, {v(48+4*k,4)} offset:{k*8192}' for k in range(3)]
def xs_load(A, both=True, pre=()):
    D = A.newlabel('xsok'); RT = A.newlabel('xsretry'); U = A.newlabel('xsu'); RU = A.newlabel('xsretryu')
    for t in pre: A(t)
    for tp in range(7): A(XLD(tp))
    if both: A(f's_cmp_eq_u32 s{sU}, 1\ns_cbranch_scc1 {U}')
    for t in XWR: A(t)
    check(A, regs(80, 28), TMP)
    A(f's_cbranch_vccnz {RT}\n{D}:')
    barrier(A)
    def retry():
        A(f'{RT}:')
        poll(A, [XLD(6)], regs(104, 4), TMP)
        poll(A, [XLD(tp) for tp in range(6)], regs(80, 24), TMP)
        for t in XWR: A(t)
        A(f's_branch {D}')
        if not both: return
        A(f'{U}:\ns_add_u32 s{sT2}, s{sXS}, s{sXD}')
        for t in XLD2: A(t)
        A(f'v_xor_b32 v0, s{sXX}, v{XSW}\nv_add_u32 v0, s{sXL}, v0')
        for t in XWR + XWR2: A(t)
        check(A, regs(80, 28) + regs(48, 12), TMP)
        A(f's_cbranch_vccz {D}')
        poll(A, [XLD(6)], regs(104, 4), TMP)
        poll(A, [XLD(tp) for tp in range(6)] + XLD2, regs(80, 24) + regs(48, 12), TMP)
        for t in XWR + XWR2: A(t)
        A(f's_branch {D}')
    return retry
def next_seg(A, last):
    A(f"""
    s_add_u32 s{sSEG}, s{sSEG}, 3
    s_add_u32 s{sXS}, s{sXS}, {3*28672}
    v_xor_b32 v{XSW}, {XS_FLIP}, v{XSW}
    s_cmp_ge_u32 s{sSEG}, {NSEG}
    s_cbranch_scc1 {last}
    """)
def flip_read(A):
    A(f'v_xor_b32 v{XSR0}, {XS_FLIP}, v{XSR0}\nv_xor_b32 v{XSR1}, {XS_FLIP}, v{XSR1}\ns_add_u32 s{sN}, s{sN}, 1')

class GSeq:
    def __init__(self, A, R, passes):
        self.A, self.R, self.passes = A, R, passes
    def rd(self, i):
        if i >= 14 * len(self.passes): return []
        kind, mt, ab = self.passes[i // 14]; t = i % 14
        o = [f'ds_read_b128 {v(80+(i%3)*4,4)}, v{XSR1 if t & 1 else XSR0} offset:{L_XS + (t>>1)*4096 + mt*2048}']
        if kind == 2 and not self.R.X: o.append(f'ds_read_b128 {v(92+(i%3)*4,4)}, v{PARK} offset:{t*1024}')
        return o
    def start(self):
        for t in self.rd(0) + self.rd(1): self.A(t)
    def ops(self, p):
        kind, mt, ab = self.passes[p]; R = self.R; o = []
        for t in range(14):
            i = p * 14 + t; f = v(80 + (i % 3) * 4, 4)
            for q in range(4):
                D = v(ab + q * 4, 4); c = '0' if t == 0 else D
                if kind == 1: m = f'{MF} {D}, {R.wa(q,t)}, {f}, {c}'
                else:
                    w = v(92 + (i % 3) * 4, 4) if (q == 3 and not R.X) else R.wb(q, t)
                    m = f'{MF} {D}, {f}, {w}, {c}'
                r = self.rd(i + 2)
                o.append([m] + r[q:q+1] if q < 2 else [m])
        return o

def kx_out(mt, ab, ob):
    o = []
    for zz in range(2):
        d = ob + zz * 4
        for k in range(4): o.append(f'v_cvt_pk_bf16_f32 v{d+k}, v{ab+zz*8+2*k}, v{ab+1+zz*8+2*k}')
        o.append(f'buffer_store_dwordx4 {v(d,4)}, v{LANE16}, s[8:11], s{sKX} offen offset:{(zz*2+mt)*1024}')
    return o
def v_out(A, a0, a1):
    for hh in range(4):
        for r in range(4): A(f'v_cvt_pk_bf16_f32 v{VV(hh)+r}, v{a0+hh*4+r}, v{a1+hh*4+r}')

def kx_flag(A, kt):
    A(f"""
    s_lshl_b32 s{sT0}, s{sN}, 1
    s_or_b32 s{sT0}, s{sT0}, {kt}
    s_waitcnt vmcnt(0)
    v_mov_b32 v{TMP}, s{sT0}
    s_mov_b64 exec, 1
    buffer_store_dword v{TMP}, off, s[8:11], s{sFL}
    s_mov_b64 exec, -1
    """)

def get_mem(A, R, zr, st):
    sets = (108, 100)
    ld = lambda m: A(f'buffer_load_dwordx4 {v(m,4)}, v{MEM1}, s[8:11], s{sMEMR} offen sc1\nbuffer_load_dwordx4 {v(m+4,4)}, v{MEM2}, s[8:11], s{sMEMR} offen sc1')
    L = A.newlabel('mpoll'); D = A.newlabel('mgot')
    ld(sets[0])
    for r in zr: A(f'v_mov_b32 v{r}, 0')
    A(f's_mov_b32 s{SCNT}, 0\n{L}:')
    for k in range(2):
        m = sets[k]
        ld(sets[1 - k])
        if k == 0: A(f's_add_u32 s{SCNT}, s{SCNT}, 1\ns_cmp_gt_u32 s{SCNT}, {TIMEOUT}\ns_cbranch_scc1 Lfail')
        for _ in range(OPT['mwarm']): A(f'v_mov_b32 v{TMP}, 0\ns_nop 3')
        A(f's_waitcnt vmcnt(3)\nds_write_b128 v{MEM1}, {v(m,4)} offset:{L_MEM}\ns_waitcnt vmcnt(2)\nds_write_b128 v{MEM2}, {v(m+4,4)} offset:{L_MEM}')
        check(A, regs(m, 8), TMP)
        A(f's_cbranch_vccz {D}' if k == 0 else f's_cbranch_vccnz {L}')
    A(f'{D}:')
    st('mgot')
    barrier(A)
    st('b2')
    for b in range(7):
        if b == 5: A('s_waitcnt vmcnt(0)')
        A(f'ds_read_b128 {v(FR+4*b,4)}, v{LANE16} offset:{L_MEM + b*1024}')

def zero(A, base, n):
    for r in range(base, base + n): A(f'v_mov_b32 v{r}, 0')

def km(A, R, fill):
    acc = lambda tl: 48 + 4 * tl
    C = lambda tt: 108 + 4 * tt
    def tile(tl, hooks={}):
        for b in range(7):
            A(f'{SM} {v(acc(tl),4)}, {v(FR+4*b,4)}, {R.wa(tl,2*b,8)}, v{IDX}')
            if b in hooks: hooks[b]()
    c1 = lambda d, s_: A(f'v_cvt_pk_bf16_f32 v{d}, v{s_}, v{s_+1}')
    tile(0)
    tile(2, {2: lambda: c1(C(0), acc(0)), 3: lambda: c1(C(0) + 1, acc(0) + 2)})
    tile(1, {1: lambda: c1(C(0) + 2, acc(2)), 2: lambda: c1(C(0) + 3, acc(2) + 2),
             4: lambda: A(f'{MF} {v(acc(0),4)}, {v(C(0),4)}, {v(SEL,4)}, 0'),
             5: lambda: A(f'ds_read2_b32 v[108:109], v{NATA} offset0:0 offset1:32'),
             6: lambda: A(f'ds_read2_b32 v[110:111], v{NATA} offset0:1 offset1:33')})
    tile(3, {0: lambda: c1(116, acc(0)), 1: lambda: c1(117, acc(0) + 2), 2: lambda: c1(C(1), acc(1)), 3: lambda: c1(C(1) + 1, acc(1) + 2),
             4: lambda: A('s_waitcnt lgkmcnt(0)')})
    fill(OPT['kf'])
    cvt(A, C(1) + 2, acc(3))
    A(f'{MF} {v(acc(1),4)}, {v(C(1),4)}, {v(SEL,4)}, 0')
    fill(OPT['kf'])
    cvt(A, 118, acc(1))
    A(f'{MF} {v(acc(2),4)}, v[116:119], v[108:111], 0')
    A(f'buffer_store_dwordx4 v[116:119], v{LANE16}, s[8:11], s{sKM} offen')
    fill(OPT['kf'])
    A(f'ds_write_b128 v{SW}, {v(acc(2),4)}')

def zop(R, hh, b):
    w = v(48 + (b & 1) * 8, 8) if (hh == 3 and not R.X) else R.wb(hh, 2 * b, 8)
    return f'{SM} {v(ZACC+4*hh,4)}, {v(FR+4*b,4)}, {w}, v{IDX}'
def prd(b):
    p = 48 + (b & 1) * 8
    return [f'ds_read_b128 {v(p,4)}, v{PARK} offset:{2*b*1024}', f'ds_read_b128 {v(p+4,4)}, v{PARK} offset:{(2*b+1)*1024}']

def s_reduce(A, fill, st, after_read=()):
    st('sw')
    fill(OPT['wf'])
    barrier(A)
    st('bs')
    T = STAT
    A(f'ds_read2_b32 {v(T,2)}, v{SR} offset0:0 offset1:160')
    ar = list(after_read)
    for _ in range(OPT['rf']):
        fill(1); take(A, ar, 1)
    A(f'v_add_f32 v{T}, v{T}, v{T+1}')
    take(A, ar, 2)
    if OPT['df']: fill(1)
    A(f'v_add_f32_dpp v{T}, v{T}, v{T} quad_perm:[1,0,3,2] {DPP}')
    take(A, ar, 2)
    if OPT['df']: fill(1)
    A(f'v_add_f32_dpp v{T}, v{T}, v{T} quad_perm:[2,3,0,1] {DPP}')
    A(f'buffer_store_dword v{T}, v{SO}, s[8:11], s{sSW} offen')
    take(A, ar, 9)

E_LOADS = [f'buffer_load_dwordx4 {v(108+4*pp,4)}, v{LANE16}, s[8:11], s{sER} offen offset:{pp*1024} sc1' for pp in range(2)] + \
          [f'buffer_load_dword v{STAT+k}, v{STA}, s[8:11], s{sSTR} offen offset:{4*k} sc1' for k in range(2)]
SSET = (80, 72)
S_LOADS = [[f'buffer_load_dwordx4 {v(m,4)}, v{LANE16}, s[8:11], s{sSR0} offen sc1',
            f'buffer_load_dwordx4 {v(m+4,4)}, v{LANE16}, s[8:11], s{sSR1} offen sc1'] for m in SSET]
def zmix(h):
    Z = lambda x: ZACC + 4 * x
    o = [f'v_permlane32_swap_b32 v{Z(h)+r}, v{Z(h+2)+r}' for r in range(4)]
    o += [f'v_add_f32 v{Z(h)+r}, v{Z(h)+r}, v{Z(h+2)+r}' for r in range(4)]
    o += [f'v_cvt_pk_bf16_f32 v{B3+2*h+p}, v{Z(h)+2*p}, v{Z(h)+2*p+1}' for p in range(2)]
    return o

def finish(A, R, st, pre_b3=()):
    eregs = regs(108, 8) + [STAT, STAT + 1]
    st('zend')
    check(A, eregs, TMP)
    D = A.newlabel('eok'); ER = A.newlabel('eretry')
    A(f's_cbranch_vccnz {ER}\n{D}:')
    st('egot')
    yop = [f'{MF} {v(48+4*hq,4)}, {v(108+4*(hq&1),4)}, {v(VV(hq),4)}, 0' for hq in range(4)]
    zm = zmix(1)
    weave(A, yop, zm, 1)
    take(A, zm, 99)
    for t in S_LOADS[1]: A(t)
    for hq in range(2): cvt(A, B4 + 2 * hq, 48 + 4 * hq)
    A(f'v_permlane16_swap_b32 v{B3}, v{B3+2}\nv_permlane16_swap_b32 v{B3+1}, v{B3+3}')
    for hq in range(2, 4): cvt(A, 92 + 2 * (hq - 2), 48 + 4 * hq)
    for k in (0, 2, 1, 3): A(f'v_cndmask_b32 v{B4+k}, v{92+k}, v{B4+k}, s[{sLO32}:{sLO32+1}]')
    L = A.newlabel('sred'); K = A.newlabel('sok'); RT = A.newlabel('sretry')
    A(f'v_permlane16_swap_b32 v{B4}, v{B4+2}\ns_mov_b32 s{SCNT}, 0\nv_permlane16_swap_b32 v{B4+1}, v{B4+3}')
    st('rdy')
    def head(m):
        A(f"""
        s_waitcnt vmcnt(2)
        v_pk_add_f32 v[96:97], {v(m,2)}, {v(m+4,2)}
        v_pk_add_f32 v[98:99], {v(m+2,2)}, {v(m+6,2)}
        v_max3_f32 v100, v96, v97, v98
        v_max3_f32 v100, v100, v99, v{STAT}
        v_pk_add_f32 v[104:105], v[96:97], v[98:99]
        v_cmp_u_f32 vcc, v104, v105
        """)
    A(f'{L}:')
    head(SSET[0])
    A(f's_cbranch_vccnz {RT}\n{K}:')
    st('sgot')
    A(f"""
    v_max_f32_dpp v100, v100, v100 row_ror:8 {DPP}
    v_sub_f32 v102, v{STAT}, v100
    v_pk_add_f32 v[96:97], v[96:97], v[100:101] op_sel_hi:[1,0] neg_lo:[0,1] neg_hi:[0,1]
    v_pk_add_f32 v[98:99], v[98:99], v[100:101] op_sel_hi:[1,0] neg_lo:[0,1] neg_hi:[0,1]
    v_exp_f32 v96, v96
    v_exp_f32 v97, v97
    v_exp_f32 v98, v98
    v_exp_f32 v99, v99
    v_exp_f32 v102, v102
    v_pk_add_f32 v[104:105], v[96:97], v[98:99]
    v_add_f32 v104, v104, v105
    v_fmac_f32 v104, v102, v{STAT+1}
    v_pk_mul_f32 v[102:103], v[102:103], {v(M01,2)} op_sel_hi:[0,1]
    v_add_f32_dpp v104, v104, v104 row_ror:8 {DPP}
    v_rcp_f32 v104, v104
    v_pk_mul_f32 v[96:97], v[96:97], v[104:105] op_sel_hi:[1,0]
    v_pk_mul_f32 v[98:99], v[98:99], v[104:105] op_sel_hi:[1,0]
    v_pk_mul_f32 v[102:103], v[102:103], v[104:105] op_sel_hi:[1,0]
    v_cvt_pk_bf16_f32 v48, v96, v97
    v_cvt_pk_bf16_f32 v49, v98, v99
    v_cvt_pk_bf16_f32 v102, v102, v103
    v_mov_b32_dpp v50, v48 row_ror:8 {DPP}
    v_mov_b32_dpp v51, v49 row_ror:8 {DPP}
    v_cndmask_b32 v92, 0, v102, s[{sAM(0)}:{sAM(0)+1}]
    v_cndmask_b32 v93, 0, v102, s[{sAM(1)}:{sAM(1)+1}]
    {MF} v[60:63], {v(B3,4)}, v[48:51], 0
    v_cndmask_b32 v94, 0, v102, s[{sAM(2)}:{sAM(2)+1}]
    v_cndmask_b32 v95, 0, v102, s[{sAM(3)}:{sAM(3)+1}]
    {MF} v[60:63], {v(B4,4)}, v[92:95], v[60:63]
    ds_write_b128 v{MEM1}, v[60:63] offset:{L_RED1}
    """)
    st('fw')
    for t in pre_b3: A(t)
    if not R.X: A(f's_cmp_lg_u32 s{sW}, 0')
    barrier(A)
    st('b3')
    if not R.X:
        N = A.newlabel('nored')
        A(f's_cbranch_scc1 {N}')
        for w in range(4): A(f'ds_read_b64 {v(52+2*w,2)}, v{RED1R} offset:{w*1024}')
        A(f"""
        v_pk_add_f32 v[52:53], v[52:53], v[54:55]
        v_pk_add_f32 v[52:53], v[52:53], v[56:57]
        v_pk_add_f32 v[52:53], v[52:53], v[58:59]
        v_cvt_pk_bf16_f32 v52, v52, v53
        buffer_store_dword v52, v{LANE4}, s[8:11], s{sMEMW} offen sc1
        {N}:
        """)
    def retry():
        A(f'{ER}:')
        poll(A, E_LOADS, eregs, TMP)
        for t in S_LOADS[0]: A(t)
        A(f's_branch {D}')
        A(f'{RT}:')
        for k in range(2):
            check(A, regs(SSET[k], 8), TMP)
            A(f's_cbranch_vccz {K}')
            for t in S_LOADS[k]: A(t)
            for _ in range(OPT['swarm']): A(f'v_mov_b32 v{TMP}, 0\ns_nop 3')
            if k == 0:
                head(SSET[1])
                A(f's_cbranch_vccz {K}')
        A(f's_add_u32 s{SCNT}, s{SCNT}, 1\ns_cmp_gt_u32 s{SCNT}, {TIMEOUT}\ns_cbranch_scc1 Lfail')
        A(f's_branch {L}')
    return retry

def s_clear(A):
    A(f'v_mov_b32 v{TMP}, -1\nbuffer_store_dword v{TMP}, v{SO}, s[8:11], s{sSC} offen')

EX_LOADS = [f'buffer_load_dwordx4 {v(48+8*hh+4*qt,4)}, v{LANE16}, s[8:11], s{sP23 if hh >> 1 else sP01} offen offset:{(hh&1)*2048+qt*1024} sc1' for hh in range(4) for qt in range(2)]
RES_LOAD = f'buffer_load_dword v{RESV}, v{RES}, s[12:15], s{sRES} offen sc1'
Y_OPS = [f'{MF} {v(48+8*hh+4*qt,4)}, {v(VV(hh),4)}, {v(48+8*hh+4*qt,4)}, 0' for hh in range(4) for qt in range(2)]
LATE = [f'buffer_load_dwordx4 {v(32+4*qt,4)}, v{ALA}, s[8:11], s{sPM} offen offset:{2048+qt*256} sc1' for qt in range(2)] + \
       [f'buffer_load_dwordx4 {v(108+4*qt,4)}, v{LANE16}, s[8:11], s{sPM} offen offset:{qt*1024} sc1' for qt in range(2)]
LREG = regs(32, 8) + regs(108, 8) + [RESV]

def tok_finish(A, st, fill):
    st('tl')
    check(A, LREG, TMP)
    D = A.newlabel('lateok'); RT = A.newlabel('lateretry')
    A(f's_cbranch_vccnz {RT}\n{D}:')
    st('tf')
    for hh in range(4):
        for qt in range(2):
            for p in range(2):
                y = v(48 + 8 * hh + 4 * qt + 2 * p, 2); d = v(48 + 4 * qt + 2 * p, 2)
                al = v(32 + 4 * qt + (hh & 2), 2); sel = f'op_sel:[0,{hh&1}{",0" if hh else ""}] op_sel_hi:[1,{hh&1}{",1" if hh else ""}]'
                if hh == 0: A(f'v_pk_mul_f32 {d}, {y}, {al} {sel}')
                else: A(f'v_pk_fma_f32 {d}, {y}, {al}, {d} {sel}')
    A(f'v_lshlrev_b32 v32, 16, v{RESV}\nv_and_b32 v33, 0xffff0000, v{RESV}')
    for qt in range(2): A(f'{MF} {v(48+4*qt,4)}, {v(B3,4)}, {v(108+4*qt,4)}, {v(48+4*qt,4)}')
    fill(1)
    A(f'ds_write_b128 v{RED2W}, v[48:51] offset:{L_RED2}')
    fill(1)
    A(f'ds_write_b128 v{RED2W}, v[52:55] offset:{L_RED2+1024}')
    fill(5)
    barrier(A)
    G = 56
    for w in range(4):
        A(f'ds_read_b64 {v(G+2*w,2)}, v{RED2R} offset:{L_RED2 + w*2048}')
    fill(4)
    for w in range(4):
        A(f'v_add_f32 v32, v32, v{G+2*w}\nv_add_f32 v33, v33, v{G+2*w+1}')
        fill(1)
    A(f"""
    v_cvt_pk_bf16_f32 v32, v32, v33
    buffer_store_dword v32, v{LANE4}, s[8:11], s{sXA} offen sc1
    """)
    st('xa')
    def retry():
        A(f'{RT}:')
        poll(A, [RES_LOAD] + LATE, LREG, TMP)
        A(f's_branch {D}')
    return retry

NF = 15
def pass0(A, R, G, st, lab):
    G.start()
    ops = G.ops(0)
    o = kx_offset(R)
    side = {}
    e = OPT['estep']
    for k in range(8): side[k * e] = [EX_LOADS[k]]
    y0 = OPT['y0']
    side[y0] = side.get(y0, []) + Y_OPS[:4]
    assert y0 <= 10 * e
    for k in range(4): side[(8 + k) * e] = side.get((8 + k) * e, []) + [LATE[(k + 2) & 3]]
    side[OPT['y1']] = side.get(OPT['y1'], []) + Y_OPS[4:]
    for i, m in enumerate(ops):
        for t in m: A(t)
        if i in side:
            for t in side[i]: A(t)
        else: take(A, o, 1)
    ops = G.ops(1)[:NF]
    def emit(k):
        for _ in range(k):
            for t in ops.pop(0): A(t)
    retry = tok_finish(A, st, emit)
    assert not ops
    A(f'{lab}_p1:')
    def first():
        A(f'{lab}_first:')
        G.start()
        o = kx_offset(R)
        weave(A, G.ops(0) + G.ops(1)[:NF], o, 2)
        A(f's_waitcnt lgkmcnt(0)\ns_nop 7\ns_branch {lab}_p1')
    def last():
        A(f'{lab}_last:')
        for t in [RES_LOAD] + EX_LOADS + Y_OPS + LATE: A(t)
        r2 = tok_finish(A, lambda n: None, lambda k: None)
        A('s_branch Ldone')
        r2()
    return [retry, first, last]

NSEG = 64
OPT = dict(mwarm=2, swarm=1, kf=1, wf=4, rf=3, df=1, spos=5, xpad=4, estep=3, y0=24, y1=40, f0=46, f1=22)
def gen_attn(A, opts):
    global NSEG
    if 'one' in opts: NSEG = 3
    for o in opts:
        k, _, x = o.partition('=')
        if k in OPT: OPT[k] = int(x)
    st = Stamps(A, opts, 'ast')
    st.init()
    A(f"""
    s_lshl_b32 s{sT0}, s{sLAYER}, 13
    s_xor_b32 s3, s3, s{sT0}
    s_lshr_b32 s{sH}, s{sRANK}, 1
    s_and_b32 s{sU}, s{sRANK}, 1
    s_add_u32 s{sT0}, s{sH}, 16
    s_cmp_eq_u32 s{sU}, 1
    s_cselect_b32 s{sJ}, s{sH}, s{sT0}
    s_lshl_b32 s{sB}, s{sU}, 2
    s_add_u32 s{sB}, s{sB}, s{sW}
    s_mov_b32 s{sSEG}, s{sTEAM}
    s_mov_b32 s{sN}, 0
    s_add_u32 s{sT0}, s6, {XB}
    s_addc_u32 s{sT1}, s7, 0
    s_cmp_eq_u32 s{sLAYER}, 0
    s_cselect_b32 s12, s4, s{sT0}
    s_cselect_b32 s13, s5, s{sT1}
    s_mov_b32 s14, {XBYTES}
    s_mov_b32 s15, 0x20000
    s_mov_b32 s{sLO8}, 0x00ff00ff
    s_mov_b32 s{sLO8+1}, 0x00ff00ff
    s_lshl_b32 s{sFL}, s{sH}, 7
    s_add_u32 s{sFL}, s{sFL}, s{sTB}
    s_add_u32 s{sFL}, s{sFL}, {T_FL}
    s_mul_i32 s40, s{sH}, 7
    s_add_u32 s40, s40, s{sB}
    s_mul_i32 s40, s40, {4*14336}
    s_add_u32 s40, s40, {WA}
    s_lshl_b32 s41, s{sJ}, 2
    s_add_u32 s41, s41, s{sW}
    s_mul_i32 s41, s41, {4*14336}
    s_add_u32 s41, s41, {WB}
    s_and_b32 s{sT1}, s{sW}, 1
    s_mul_i32 s42, s{sT1}, 14336
    s_lshr_b32 s{sT1}, s{sW}, 1
    s_lshl_b32 s{sT1}, s{sT1}, 16
    s_add_u32 s42, s42, s{sT1}
    s_add_u32 s42, s42, {PARK_A}
    """)
    for d in range(4):
        m = (3 << (2 * d)) * 0x00010001
        A(f's_mov_b32 s{sAM(d)}, {m:#x}\ns_mov_b32 s{sAM(d)+1}, {m:#x}')
    def wload(dst, so, q):
        A(f'buffer_load_dwordx4 {dst}, v{LANE16}, s[8:11], s{so} offen offset:{(q&3)*1024}')
        if q & 3 == 3: A(f's_add_u32 s{so}, s{so}, 4096')
    A(f's_cmp_eq_u32 s{sB}, 7\ns_cselect_b32 s40, s41, s40')
    for q in range(56): wload(a(4 * q, 4), 40, q)
    A(f"""
    v_lshrrev_b32 v48, 3, v0
    s_lshl_b32 s{sT0}, s{sW}, 3
    v_add_u32 v48, s{sT0}, v48              ; row = 8w + r8
    v_and_b32 v49, 7, v0                    ; c
    v_mul_u32_u24 v{XSG}, 896, v48
    v_lshl_add_u32 v{XSG}, v49, 4, v{XSG}
    v_bfe_u32 v50, v48, 1, 3
    v_xor_b32 v50, v50, v49
    v_lshlrev_b32 v50, 4, v50
    v_lshl_add_u32 v{XSW}, v48, 7, v50
    v_add_u32 v{XSW}, {XS_A}, v{XSW}
    v_and_b32 v48, 15, v0                   ; n
    v_lshrrev_b32 v49, 4, v0                ; g
    v_lshrrev_b32 v50, 1, v48
    v_xor_b32 v50, v50, v49
    v_lshlrev_b32 v50, 4, v50
    v_lshl_add_u32 v{XSR0}, v48, 7, v50
    v_add_u32 v{XSR0}, {XS_A}, v{XSR0}
    v_xor_b32 v{XSR1}, 64, v{XSR0}
    v_mov_b32 v{IDX}, 0x4444
    v_mov_b32 v50, 0xeeee
    v_cndmask_b32 v{IDX}, v50, v{IDX}, s[{sLO8}:{sLO8+1}]
    s_lshl_b32 s{sT0}, s{sW}, 10
    v_add_u32 v{MEM1}, s{sT0}, v{LANE16}
    s_cmp_eq_u32 s{sW}, 3
    s_cselect_b32 s{sT1}, 0, 4096
    v_add_u32 v{MEM2}, s{sT1}, v{MEM1}
    v_add_u32 v{PARK}, s42, v{LANE16}
    v_and_b32 v50, 7, v48                   ; i
    v_lshl_add_u32 v51, v49, 3, v50
    v_lshlrev_b32 v51, 4, v51               ; (g*8+i)*16
    v_mov_b32 v54, {OOB}
    v_lshlrev_b32 v{ALA}, 4, v48
    s_mov_b32 s{sLO32}, -1
    s_mov_b32 s{sLO32+1}, 0
    v_lshrrev_b32 v51, 1, v51
    s_lshl_b32 s{sT0}, s{sW}, 8
    v_add_u32 v{STA}, s{sT0}, v51           ; (4w+g)*64 + i*8
    v_and_b32 v51, 1, v0
    v_cvt_f32_u32 v{M01+1}, v51
    v_sub_f32 v{M01}, 1.0, v{M01+1}
    v_lshlrev_b32 v{LANE4}, 2, v0
    v_lshrrev_b32 v51, 3, v48
    v_lshrrev_b32 v52, 1, v49
    v_lshl_add_u32 v51, v51, 1, v52
    v_lshlrev_b32 v51, 8, v51
    v_lshl_add_u32 v51, v50, 4, v51
    v_and_b32 v52, 1, v49
    v_lshl_add_u32 v51, v52, 3, v51
    s_lshl_b32 s{sT0}, s{sB}, 10
    s_add_u32 s{sT0}, s{sT0}, {L_MEM}
    v_add_u32 v{NATA}, s{sT0}, v51
    s_mul_i32 s{sT0}, s{sW}, {RS_STRIDE}
    s_add_u32 s{sT0}, s{sT0}, {L_RS}
    v_add_u32 v{SW}, s{sT0}, v{LANE16}
    v_and_b32 v51, 3, v0
    v_mul_u32_u24 v52, {RS_STRIDE}, v51
    v_and_b32 v53, 60, v0
    v_add_u32 v52, v52, v53
    s_lshr_b32 s{sT0}, s{sW}, 1
    s_lshl_b32 s{sT0}, s{sT0}, 8
    s_and_b32 s{sT1}, s{sW}, 1
    s_lshl_b32 s{sT1}, s{sT1}, 6
    s_add_u32 s{sT0}, s{sT0}, s{sT1}
    s_add_u32 s{sT0}, s{sT0}, {L_RS}
    v_add_u32 v{SR}, s{sT0}, v52
    s_lshl_b32 s{sT0}, s{sW}, 6
    v_add_u32 v53, s{sT0}, v53
    v_cmp_eq_u32 vcc, 0, v51
    v_cndmask_b32 v{SO}, v54, v53, vcc
    v_lshlrev_b32 v51, 8, v51
    v_bfe_u32 v52, v0, 2, 3
    v_lshl_add_u32 v51, v52, 4, v51
    v_lshrrev_b32 v52, 5, v0
    v_lshl_add_u32 v51, v52, 3, v51
    v_add_u32 v{RED1R}, {L_RED1}, v51
    s_lshl_b32 s{sT0}, s{sW}, 11
    v_add_u32 v{RED2W}, s{sT0}, v{LANE16}
    v_lshrrev_b32 v52, 2, v0
    v_bfe_u32 v51, v0, 1, 1
    v_lshlrev_b32 v51, 8, v51
    v_lshl_add_u32 v51, v52, 4, v51
    v_and_b32 v53, 1, v0
    v_lshl_add_u32 v51, v53, 3, v51
    s_lshl_b32 s{sT0}, s{sW}, 9
    v_add_u32 v{RED2R}, s{sT0}, v51
    s_lshr_b32 s{sT0}, s{sW}, 1
    s_mul_i32 s{sT0}, s{sT0}, 14336
    s_and_b32 s{sT1}, s{sW}, 1
    s_lshl_b32 s{sT1}, s{sT1}, 4
    s_add_u32 s{sT0}, s{sT0}, s{sT1}
    v_mul_u32_u24 v52, 896, v52
    v_and_b32 v53, 3, v0
    v_lshl_add_u32 v52, v53, 2, v52
    v_add_u32 v{RES}, s{sT0}, v52
    s_cmp_eq_u32 s{sB}, 7
    s_cbranch_scc1 LX
    """)

    R = AW
    A(f"""
    v_and_b32 v51, 1, v48
    v_lshlrev_b32 v51, 4, v51
    v_mov_b32 v52, 0x3f80
    v_lshlrev_b32 v51, v51, v52
    v_bfe_u32 v52, v48, 2, 1
    v_and_b32 v53, 1, v49
    v_cmp_eq_u32 vcc, v52, v53
    v_cndmask_b32 v51, 0, v51, vcc
    v_lshrrev_b32 v52, 3, v48
    v_bfe_u32 v53, v48, 1, 1
    v_lshl_add_u32 v52, v52, 1, v53
    """)
    for d in range(4):
        A(f'v_cmp_eq_u32 vcc, {d}, v52\nv_cndmask_b32 v{SEL+d}, 0, v51, vcc')
    A(f's_lshl_b32 s{sT0}, s{sB}, 2\ns_add_u32 s{sFL}, s{sFL}, s{sT0}')
    A(f"""
    s_sub_u32 s{sT0}, 3, s{sW}
    s_mul_i32 s{sXD}, s{sT0}, {8*896}
    s_lshl_b32 s{sT1}, s{sW}, 7
    s_add_u32 s{sXD}, s{sXD}, s{sT1}
    s_and_b32 s{sXX}, s{sT0}, 1
    s_lshl_b32 s{sXX}, s{sXX}, 6
    s_lshl_b32 s{sXL}, s{sT0}, 10
    s_lshl_b32 s{sT1}, s{sW}, 12
    s_add_u32 s{sXL}, s{sXL}, s{sT1}
    """)
    job_offsets(A, R)
    A(f's_cmp_ge_u32 s{sJ}, 28\ns_cbranch_scc1 LB')
    for q in range(42): wload(R.wb(q // 14, q % 14), 41, q)
    A(f's_add_u32 s41, s41, 2048\ns_mov_b32 m0, s42')
    for t in range(14):
        A(f'buffer_load_dwordx4 v{LANE16}, s[8:11], s41 offen lds')
        if t < 13: A('s_add_u32 s41, s41, 1024\ns_add_u32 m0, m0, 1024')
    tails = [xs_load(A)]
    if 'dbg' in opts: A('s_memrealtime s[82:83]\ns_waitcnt lgkmcnt(0)')
    A('s_waitcnt vmcnt(0)\ns_branch LA_first\nLA_job:')
    A.reset()
    st('b1')
    G = GSeq(A, R, [(1, 0, 92), (1, 1, 64), (2, 0, 48), (2, 1, 64)])
    tails += pass0(A, R, G, st, 'LA')
    F0, F1 = OPT['f0'], OPT['f1']
    def g1_rest(G):
        o = kx_out(0, 92, 108) + job_offsets2(R); ops = G.ops(1)
        weave(A, ops[NF:F0], o, 2); take(A, o, 99)
        kx_flag(A, 0)
        weave(A, ops[F0:], [], 0)
    g1_rest(G)
    o = kx_out(1, 64, 104); ops = G.ops(2)
    weave(A, ops[:F1], o, 2, start=1); assert not o
    kx_flag(A, 1)
    weave(A, ops[F1:], [], 0)
    weave(A, G.ops(3), [], 0)
    v_out(A, 48, 64)
    st('gend')
    get_mem(A, R, regs(48, 32), st)
    N = [zop(R, hh, b) for b in range(7) for hh in (0, 2)] + [zop(R, 1, b) for b in range(7)]
    def fill(n): take(A, N, n)
    km(A, R, fill)
    s_reduce(A, fill, st, prd(0) + prd(1))
    st('ts')
    el = list(E_LOADS)
    while len(N) > 7:
        fill(1); take(A, el, 2)
    take(A, el, 9)
    zm = zmix(0)
    ops = []
    for b in range(7):
        if len(N) >= 7 - b: ops.append(N.pop(0))
        ops.append([zop(R, 3, b)] + (prd(b + 2) if b < 5 else []) + (S_LOADS[0] if b == OPT['spos'] else []))
    weave(A, ops, zm, 1, start=1)
    take(A, zm, 99)
    tails.append(finish(A, R, st))
    A('s_barrier')
    st('b3b')
    next_seg(A, 'LA_last')
    s_clear(A)
    flip_read(A)
    tails.append(xs_load(A, pre=[RES_LOAD]))
    st('end')
    st.flush(TMP, LANE4)
    A('s_branch LA_job')
    for t in tails: t()
    A('LB:\ns_waitcnt vmcnt(0)\nLB_job:')
    tails = [xs_load(A, both=False)]
    G = GSeq(A, R, [(1, 0, 92), (1, 1, 64)])
    G.start()
    o = kx_offset(R); weave(A, G.ops(0) + G.ops(1)[:NF], o, 2)
    g1_rest(G)
    take(A, kx_out(1, 64, 104), 99)
    kx_flag(A, 1)
    nost = lambda n: None
    get_mem(A, R, regs(48, 16), nost)
    km(A, R, lambda n: None)
    s_reduce(A, lambda n: None, nost)
    next_seg(A, 'Lend')
    s_clear(A)
    flip_read(A)
    A('s_branch LB_job')
    for t in tails: t()

    R = XW
    A('LX:')
    ALW, EWA, STW, PMA = 20, 21, 22, 23
    A(f"""
    v_lshrrev_b32 v51, 1, v49
    v_and_b32 v52, 1, v49
    v_lshl_add_u32 v51, v52, 1, v51
    v_lshrrev_b32 v52, 2, v48
    v_lshl_add_u32 v52, v52, 3, v51
    v_lshlrev_b32 v52, 5, v52
    v_and_b32 v53, 3, v0
    v_lshl_add_u32 v52, v53, 2, v52
    s_lshr_b32 s{sT0}, s{sH}, 2
    s_lshl_b32 s{sT0}, s{sT0}, 11
    s_and_b32 s{sT1}, s{sH}, 1
    s_lshl_b32 s{sT1}, s{sT1}, 10
    s_add_u32 s{sT0}, s{sT0}, s{sT1}
    s_and_b32 s{sT1}, s{sH}, 2
    s_lshl_b32 s{sT1}, s{sT1}, 6
    s_add_u32 s{sT0}, s{sT0}, s{sT1}
    s_add_u32 s{sT0}, s{sT0}, 8192
    v_add_u32 v{EWA}, s{sT0}, v52
    s_lshl_b32 s{sT0}, s{sH}, 6
    s_add_u32 s{sT0}, s{sT0}, 16384
    v_lshlrev_b32 v51, 4, v51
    v_add_u32 v51, s{sT0}, v51
    v_cmp_eq_u32 vcc, 0, v48
    v_cndmask_b32 v{STW}, v54, v51, vcc
    s_lshr_b32 s{sT0}, s{sH}, 2
    s_lshl_b32 s{sT0}, s{sT0}, 12
    s_and_b32 s{sT1}, s{sH}, 3
    v_lshrrev_b32 v51, 1, v49
    v_and_b32 v52, 1, v49
    v_lshlrev_b32 v53, 4, v48
    v_add_u32 v53, s{sT0}, v53
    v_lshl_add_u32 v55, v51, 10, v53
    v_lshl_add_u32 v55, v52, 3, v55
    s_lshl_b32 s{sT0}, s{sT1}, 8
    v_add_u32 v{PMA}, s{sT0}, v55
    v_lshl_add_u32 v55, v51, 8, v53
    s_lshl_b32 s{sT0}, s{sT1}, 2
    s_add_u32 s{sT0}, s{sT0}, 2048
    v_add_u32 v55, s{sT0}, v55
    v_cmp_eq_u32 vcc, 0, v52
    v_cndmask_b32 v{ALW}, v54, v55, vcc
    v_lshlrev_b32 v51, 2, v49
    """)
    for r in range(4):
        A(f'v_add_u32 v52, {r}, v51\nv_cmp_le_u32 s[{sMASK(r)}:{sMASK(r)+1}], v52, v48')
    FLA = 26
    A(f'v_min_u32 v{FLA}, 24, v{LANE4}')
    zero(A, 48, 4)
    A(f'ds_write_b128 v{SW}, v[48:51]')
    tails = []
    for r in range(232, 236): A(f'v_mov_b32 v{r}, -1')
    A('s_waitcnt vmcnt(0) lgkmcnt(0)\ns_barrier\ns_branch LX_first\nLX_job:')
    A.reset()
    st('b1')
    G = GSeq(A, R, [(2, 0, 92), (2, 1, 64)])
    clr = [f'buffer_store_dword v232, v{SO}, s[8:11], s{sSC} offen']
    clr += [f'buffer_store_dword v232, v{EWA}, s[8:11], s{sEC} offen offset:{q*16}' for q in range(2)]
    clr += [f'buffer_store_dwordx4 v[232:235], v{STW}, s[8:11], s{sEC} offen']
    clr += [f'buffer_store_dwordx4 v[232:235], v{LANE16}, s[8:11], s{sKM if b < 4 else sKM2} offen offset:{(b&3)*1024}' for b in range(7)]
    tails += pass0(A, R, G, st, 'LX')
    FLD = f'buffer_load_dword v142, v{FLA}, s[8:11], s{sFL} offen sc1'
    ops = G.ops(1)
    o = job_offsets2(R); weave(A, ops[NF:52], o, 2); take(A, o, 99)
    A(FLD)
    weave(A, ops[52:], [], 0)
    S00, S10, S11 = 120, 124, 128
    MX, SX = 140, 141
    KX = lambda t, kt, n=4: v(144 + kt * 56 + t * 4, n)
    def kxwait(kt):
        D = A.newlabel('kxok')
        c = f'v_cmp_gt_i32 vcc, s{sT0}, v142'
        A(f's_lshl_b32 s{sT0}, s{sN}, 1\ns_or_b32 s{sT0}, s{sT0}, {kt}\n{c}\ns_cbranch_vccz {D}')
        poll(A, [FLD], None, None, cmp=c)
        A(f'{D}:\ns_mov_b32 s{sT1}, s{sKX}')
        for t in range(14):
            A(f'buffer_load_dwordx4 {KX(t,kt)}, v{LANE16}, s[8:11], s{sT1} offen offset:{(t&1)*2048+kt*1024} sc1')
            if t & 1 and t < 13: A(f's_add_u32 s{sT1}, s{sT1}, 4096')
    kxwait(0)
    st('kx0')
    fr = lambda t, mt: 80 + ((t % 3) * 2 + mt) * 4
    v_out(A, 92, 64)
    for t in range(2): xs_read(A, fr(t, 0), t, 0); xs_read(A, fr(t, 1), t, 1)
    for t in range(14):
        for D, mt in ((S00, 0), (S10, 1)):
            A(f'{MF} {v(D,4)}, {KX(t,0)}, {v(fr(t,mt),4)}, {"0" if t == 0 else v(D,4)}')
            if t < 12: xs_read(A, fr(t + 2, mt), t + 2, mt)
        if t == 10: A(FLD)
    for t in range(14): xs_read(A, 48 + 4 * t, t, 1)
    kxwait(1)
    st('kx1')
    for t in range(14):
        A(f'{MF} {v(S11,4)}, {KX(t,1)}, {v(48+4*t,4)}, {"0" if t == 0 else v(S11,4)}')
    st('sxx')
    A(f'v_mov_b32 v{TMP}, 0xff800000')
    for D in (S00, S11):
        for r in range(4): A(f'v_cndmask_b32 v{D+r}, v{TMP}, v{D+r}, s[{sMASK(r)}:{sMASK(r)+1}]')
    A(f"""
    v_max3_f32 v132, v{S00}, v{S00+1}, v{S00+2}
    v_max3_f32 v134, v{S10}, v{S10+1}, v{S10+2}
    v_max_f32 v132, v132, v{S00+3}
    v_max3_f32 v134, v134, v{S10+3}, v{S11}
    v_max3_f32 v134, v134, v{S11+1}, v{S11+2}
    v_max_f32 v134, v134, v{S11+3}
    v_permlane32_swap_b32 v132, v134
    v_max_f32 v{MX}, v132, v134
    v_mov_b32 v132, v{MX}
    v_permlane16_swap_b32 v{MX}, v132
    v_max_f32 v{MX}, v{MX}, v132
    v_mov_b32 v132, v{MX}
    v_mov_b32 v134, v{MX}
    v_permlane32_swap_b32 v132, v134
    """)
    for D, m in ((S00, 132), (S10, 134), (S11, 134)):
        for p in range(2): A(f'v_pk_add_f32 {v(D+2*p,2)}, {v(D+2*p,2)}, {v(m,2)} op_sel_hi:[1,0] neg_lo:[0,1] neg_hi:[0,1]')
    for r in range(S00, S00 + 12): A(f'v_exp_f32 v{r}, v{r}')
    for r in range(4): A(f'v_cvt_pk_bf16_f32 v{48+r}, v{S00+r}, 0')
    for r in range(4): A(f'v_cvt_pk_bf16_f32 v{52+r}, v{S10+r}, v{S11+r}')
    A(f"""
    buffer_store_dwordx4 v[48:51], v{LANE16}, s[8:11], s{sPW} offen
    buffer_store_dwordx4 v[52:55], v{LANE16}, s[8:11], s{sPW} offen offset:1024
    v_pk_add_f32 v[132:133], {v(S00,2)}, {v(S00+2,2)}
    v_pk_add_f32 v[134:135], {v(S10,2)}, {v(S10+2,2)}
    v_pk_add_f32 v[134:135], v[134:135], {v(S11,2)}
    v_pk_add_f32 v[134:135], v[134:135], {v(S11+2,2)}
    v_add_f32 v132, v132, v133
    v_add_f32 v134, v134, v135
    v_permlane32_swap_b32 v132, v134
    v_add_f32 v{SX}, v132, v134
    """)
    st('gend')
    get_mem(A, R, regs(48, 8) + regs(ZACC, 16), st)
    for b in range(7):
        for kt in range(2):
            A(f'{SM} {v(48+4*kt,4)}, {v(FR+4*b,4)}, {KX(2*b,kt,8)}, v{IDX}')
    N = [zop(R, hh, b) for b in range(7) for hh in (0, 2)] + [zop(R, hh, b) for b in range(7) for hh in (1, 3)]
    def fill(n): take(A, N, n)
    fill(2)
    for kt in range(2):
        for z in range(2): A(f'v_permlane32_swap_b32 v{48+4*kt+z}, v{50+4*kt+z}')
    for r in (48, 52, 49, 53): A(f'v_add_f32 v{r}, v{r}, v{r+2}')
    A('v_max_f32 v56, v48, v52\nv_max_f32 v57, v49, v53')
    for k in (8, 4, 2, 1):
        fill(1)
        for z in range(2): A(f'v_max_f32_dpp v{56+z}, v{56+z}, v{56+z} row_ror:{k} {DPP}')
    A("""
    v_sub_f32 v48, v48, v56
    v_sub_f32 v52, v52, v56
    v_sub_f32 v49, v49, v57
    v_sub_f32 v53, v53, v57
    v_exp_f32 v48, v48
    v_exp_f32 v52, v52
    v_exp_f32 v49, v49
    v_exp_f32 v53, v53
    v_cvt_pk_bf16_f32 v50, v48, v52
    v_cvt_pk_bf16_f32 v51, v49, v53
    """)
    A(f'buffer_store_dword v50, v{EWA}, s[8:11], s{sEW} offen\nbuffer_store_dword v51, v{EWA}, s[8:11], s{sEW} offen offset:16')
    A('v_add_f32 v48, v48, v52\nv_add_f32 v49, v49, v53\nv_mov_b32 v60, v56\nv_mov_b32 v62, v57')
    for k in (8, 4, 2, 1):
        for z in range(2): A(f'v_add_f32_dpp v{48+z}, v{48+z}, v{48+z} row_ror:{k} {DPP}')
        fill(1)
    A(f"""
    v_mul_f32 v61, 0.5, v48
    v_mul_f32 v63, 0.5, v49
    buffer_store_dwordx4 v[60:63], v{STW}, s[8:11], s{sEW} offen
    """)
    s_reduce(A, fill, st)
    st('ts')
    for t in E_LOADS: A(t)
    zm = zmix(0)
    assert len(N) <= 10
    weave(A, list(N), zm, 1, start=1)
    take(A, zm, 99)
    for k in range(OPT['xpad']): A(f'v_mov_b32 v{TMP}, 0\ns_nop 2')
    for t in S_LOADS[0]: A(t)
    KMR = lambda b: 144 + 4 * b
    kml = [f'buffer_load_dwordx4 {v(KMR(b),4)}, v{LANE16}, s[8:11], s{sKM if b < 4 else sKM2} offen offset:{(b&3)*1024} sc1' for b in range(7)]
    tails.append(finish(A, R, st, kml))
    fr = lambda t, mt: 200 + ((t % 3) * 2 + mt) * 4
    A0, B0, A1, B1 = 172, 176, 180, 184
    A(f's_mov_b32 s{SCNT}, 0')
    for r in range(232, 236): A(f'v_mov_b32 v{r}, -1')
    A(f'buffer_store_dwordx2 v[232:233], v{PMA}, s[8:11], s{sPMC} offen')
    A(f'buffer_store_dword v232, v{ALW}, s[8:11], s{sPMC} offen')
    A('s_barrier')
    st('b3b')
    A(f's_add_u32 s{sSEG}, s{sSEG}, 3\nLX_km:')
    for t in range(2): xs_read(A, fr(t, 0), t, 0); xs_read(A, fr(t, 1), t, 1)
    for t in range(14):
        for D, mt in (((A0, A1)[t & 1], 0), ((B0, B1)[t & 1], 1)):
            A(f'{MF} {v(D,4)}, {v(KMR(t>>1),4)}, {v(fr(t,mt),4)}, {"0" if t < 2 else v(D,4)}')
            if t < 12: xs_read(A, fr(t + 2, mt), t + 2, mt)
    for r in range(4): A(f'v_permlane32_swap_b32 v{A1+r}, v{B0+r}')
    for r in range(4): A(f'v_add_f32 v{A0+r}, v{A0+r}, v{B0+r}')
    for r in range(4): A(f'v_add_f32 v{B1+r}, v{B1+r}, v{A1+r}')
    Y = A0
    for r in range(4): A(f'v_cndmask_b32 v{Y+r}, v{B1+r}, v{A0+r}, s[{sLO32}:{sLO32+1}]')
    A(f"""
    v_max3_f32 v188, v{Y}, v{Y+1}, v{Y+2}
    v_max3_f32 v188, v188, v{Y+3}, v{MX}
    v_mov_b32 v190, v188
    v_pk_add_f32 v[192:193], {v(Y,2)}, {v(Y+2,2)}
    v_cmp_u_f32 vcc, v192, v193
    s_cbranch_vccnz LX_kmchk
    LX_kmok:
    v_permlane16_swap_b32 v188, v190
    v_max_f32 v188, v188, v190
    v_sub_f32 v190, v{MX}, v188
    v_pk_add_f32 {v(Y,2)}, {v(Y,2)}, v[188:189] op_sel_hi:[1,0] neg_lo:[0,1] neg_hi:[0,1]
    v_pk_add_f32 {v(Y+2,2)}, {v(Y+2,2)}, v[188:189] op_sel_hi:[1,0] neg_lo:[0,1] neg_hi:[0,1]
    v_exp_f32 v{Y}, v{Y}
    v_exp_f32 v{Y+1}, v{Y+1}
    v_exp_f32 v{Y+2}, v{Y+2}
    v_exp_f32 v{Y+3}, v{Y+3}
    v_exp_f32 v190, v190
    v_pk_add_f32 v[192:193], {v(Y,2)}, {v(Y+2,2)}
    v_add_f32 v192, v192, v193
    v_fmac_f32 v192, v190, v{SX}
    v_mov_b32 v193, v192
    v_permlane16_swap_b32 v192, v193
    v_add_f32 v192, v192, v193
    v_rcp_f32 v192, v192
    v_pk_mul_f32 {v(Y,2)}, {v(Y,2)}, v[192:193] op_sel_hi:[1,0]
    v_pk_mul_f32 {v(Y+2,2)}, {v(Y+2,2)}, v[192:193] op_sel_hi:[1,0]
    v_mul_f32 v190, v190, v192
    v_cvt_pk_bf16_f32 v188, v{Y}, v{Y+1}
    v_cvt_pk_bf16_f32 v189, v{Y+2}, v{Y+3}
    s_waitcnt vmcnt(0)
    buffer_store_dwordx2 v[188:189], v{PMA}, s[8:11], s{sPMW} offen
    buffer_store_dword v190, v{ALW}, s[8:11], s{sPMW} offen
    """)
    st('lp')
    A(f's_cmp_ge_u32 s{sSEG}, {NSEG}\ns_cbranch_scc1 LX_last')
    A(RES_LOAD)
    for t in clr: A(t)
    flip_read(A)
    A('s_barrier')
    st('end')
    st.flush(TMP, LANE4)
    A('s_branch LX_job')
    for t in tails: t()
    A('LX_kmchk:')
    check(A, regs(144, 28), TMP)
    A('s_cbranch_vccz LX_kmok')
    for t in kml: A(t)
    A(f's_add_u32 s{SCNT}, s{SCNT}, 1\ns_cmp_gt_u32 s{SCNT}, {TIMEOUT}\ns_cbranch_scc1 Lfail\ns_waitcnt vmcnt(0)\ns_branch LX_km')
```

```python
from asmlib import *
from layout import *
TIMEOUT = 1 << 17
SCNT = 70

def regs(base, n): return list(range(base, base + n))

def check(A, rs, tmp):
    rs = list(rs)
    if len(rs) == 1:
        A(f'v_cmp_eq_u32 vcc, -1, v{rs[0]}'); return
    if len(rs) == 2:
        A(f'v_max_u32 v{tmp}, v{rs[0]}, v{rs[1]}'); rs = []
    else:
        A(f'v_max3_u32 v{tmp}, v{rs[0]}, v{rs[1]}, v{rs[2]}'); rs = rs[3:]
    while len(rs) >= 2:
        A(f'v_max3_u32 v{tmp}, v{tmp}, v{rs[0]}, v{rs[1]}'); rs = rs[2:]
    if rs: A(f'v_max_u32 v{tmp}, v{tmp}, v{rs[0]}')
    A(f'v_cmp_eq_u32 vcc, -1, v{tmp}')

def poll(A, loads, rs, tmp, cmp=None, sleep=0, body=None):
    L = A.newlabel('poll')
    A(f's_mov_b32 s{SCNT}, 0\n{L}:')
    if sleep: A(f's_sleep {sleep}')
    for t in loads: A(t)
    A(f's_add_u32 s{SCNT}, s{SCNT}, 1\ns_cmp_gt_u32 s{SCNT}, {TIMEOUT}\ns_cbranch_scc1 Lfail')
    if body: body()
    if cmp: A(cmp)
    else: check(A, rs, tmp)
    A(f's_cbranch_vccnz {L}')

def poll2(A, light, lrs, full, frs, tmp):
    L = A.newlabel('full'); M = A.newlabel('light'); D = A.newlabel('got')
    A(f's_mov_b32 s{SCNT}, 0\n{L}:')
    for t in full: A(t)
    check(A, frs, tmp)
    A(f's_cbranch_vccz {D}\n{M}:')
    for t in light: A(t)
    A(f's_add_u32 s{SCNT}, s{SCNT}, 1\ns_cmp_gt_u32 s{SCNT}, {TIMEOUT}\ns_cbranch_scc1 Lfail')
    check(A, lrs, tmp)
    A(f's_cbranch_vccnz {M}\ns_branch {L}\n{D}:')

def xg(A, op, x, t):
    A(f'v_mov_b32 v{t}, v{x}\nv_permlane16_swap_b32 v{x}, v{t}\n{op} v{x}, v{x}, v{t}')
    A(f'v_mov_b32 v{t}, v{x}\nv_permlane32_swap_b32 v{x}, v{t}\n{op} v{x}, v{x}, v{t}')

def barrier(A):
    A('s_waitcnt lgkmcnt(0)\ns_barrier')

class Stamps:
    def __init__(self, A, opts, key):
        self.A = A
        o = [x for x in opts if x.startswith(key + '=')]
        self.names = o[0].split('=')[1].split(',') if o else []
        self.on = bool(self.names)
        self.op = 's_memrealtime' if 'rt' in opts else 's_memtime'
    def init(self):
        if not self.on: return
        self.A(f"""
        s_lshl_b32 s90, s21, 5
        s_add_u32 s90, s90, s22
        s_lshl_b32 s90, s90, 2
        s_add_u32 s90, s90, s20
        s_lshl_b32 s90, s90, 12
        s_add_u32 s90, s90, {DBG}
        """)
    def __call__(self, name):
        if name not in self.names: return
        k = self.names.index(name) + 1
        if k == 1: self.A('s_memrealtime s[72:73]')
        self.A(f'{self.op} s[{72+2*k}:{73+2*k}]')
    def flush(self, t, lane4):
        if not self.on: return
        A = self.A
        A('s_waitcnt lgkmcnt(0)')
        for k in range(len(self.names) + 1): A(f'v_writelane_b32 v{t}, s{72+2*k}, {k}')
        A(f's_mov_b64 exec, 0xffff\nbuffer_store_dword v{t}, v{lane4}, s[8:11], s90 offen\ns_mov_b64 exec, -1')
        A('s_add_u32 s90, s90, 64')

def weave(A, mf, va, per, start=0):
    acc = 0.0
    for i, m in enumerate(mf):
        for t in (m if isinstance(m, list) else [m]): A(t)
        if i >= start:
            acc += per
            while acc >= 1 and va:
                A(va.pop(0)); acc -= 1

def take(A, va, n):
    for _ in range(n):
        if va: A(va.pop(0))
```

```python
XBYTES = 2048 * 896
WBYTES = 16 * 28 * 14 * 1024
MEM   = 0
CLR0  = 16384
TEAMB = 65 * 16384
KM_SLOT = 16 * 7 * 1024
T_KM  = 0
P_SLOT = 4 * 4096
T_P   = 2 * KM_SLOT
T_FL  = T_P + 2 * P_SLOT
SE_SLOT = 8192 + 8192 + 1024
T_SE  = T_FL + 2048
TEAM_STRIDE = T_SE + 4 * SE_SLOT
PART_SLOT = 14 * 32768
XS1   = TEAMB + 8 * TEAM_STRIDE
XB    = XS1 + XBYTES
XA    = XB + XBYTES
CLR_END_MIN = XA + 2 * XBYTES
CLR_PER_THREAD = -(-(CLR_END_MIN - CLR0) // (256 * 4096))
CLR_END = CLR0 + CLR_PER_THREAD * 256 * 4096
XS0   = CLR_END
WA    = XS0 + XBYTES
WB    = WA + WBYTES
BIG   = WB + WBYTES
BIG_STRIDE = 4 * PART_SLOT
B_EX  = 2 * 16 * 28672
PAR   = BIG + 8 * BIG_STRIDE
DBG   = PAR + 4096
WS_USED = DBG + (4 << 20)
if __name__ == '__main__':
    for k, x in list(globals().items()):
        if isinstance(x, int): print(k, x, hex(x))
```

```python
from asmlib import *
from layout import *
from prep import srd, fbits
import mlp, attn

LDS_BYTES = 155648
TIMEOUT = 1 << 17

def gen_main(A, opts):
    A(f"""
    s_cmp_ge_u32 s2, 256
    s_cbranch_scc1 Lend
    s_load_dwordx2 s[4:5], s[0:1], 0
    s_load_dwordx2 s[6:7], s[0:1], 112
    s_load_dwordx8 s[36:43], s[0:1], 64
    s_load_dwordx4 s[44:47], s[0:1], 96
    s_getreg_b32 s21, hwreg(HW_REG_XCC_ID)
    s_and_b32 s21, s21, 7
    v_lshrrev_b32 v2, 6, v0
    v_and_b32 v0, 63, v0
    v_readfirstlane_b32 s20, v2
    v_mov_b32 v3, 0
    s_waitcnt lgkmcnt(0)
    s_add_u32 s18, s6, {PAR}
    s_addc_u32 s19, s7, 0
    v_and_b32 v7, 31, v0
    v_lshlrev_b32 v7, 2, v7
    global_load_dword v7, v7, s[18:19]
    s_cmp_lg_u32 s20, 0
    s_cbranch_scc1 Lnorank
    s_lshl_b32 s22, s21, 2
    v_mov_b32 v4, s22
    v_mov_b32 v5, 1
    s_mov_b64 exec, 1
    global_atomic_add v6, v4, v5, s[46:47] sc0
    ds_write_b32 v3, v6
    s_waitcnt lgkmcnt(0)
    s_mov_b64 exec, -1
    Lnorank:
    s_barrier
    ds_read_b32 v6, v3
    """)
    srd(A, 8, 6, WS_USED)
    A(f"""
    s_lshr_b32 s23, s21, 2
    s_and_b32 s24, s21, 3
    v_lshlrev_b32 v1, 4, v0
    s_mul_i32 s30, s21, {TEAM_STRIDE}
    s_add_u32 s30, s30, {TEAMB}
    s_mul_i32 s31, s21, {BIG_STRIDE}
    s_add_u32 s31, s31, {BIG}
    v_readfirstlane_b32 s22, v6
    v_cmp_ne_u32 vcc, 0, v7
    s_bcnt1_i32_b64 s3, vcc
    s_cmp_gt_u32 s3, 32
    s_cselect_b32 s3, 8192, 0
    s_barrier
    s_cmp_ge_u32 s22, 32
    s_cbranch_scc1 Lend
    s_cmp_eq_u32 s24, 3
    s_cbranch_scc1 Lmlp
    """)
    attn.gen_attn(A, opts)
    A('Lmlp:')
    mlp.gen_mlp(A, opts)
    A("""
    Lfail:
    s_mov_b64 exec, 1
    v_mov_b32 v2, 32
    v_mov_b32 v3, 1
    global_atomic_add v2, v3, s[46:47]
    Lend:
    s_endpgm
    """)
```

```python
from asmlib import *
from layout import *
from common import *
from prep import srd, fbits
import math

L_X, L_H, L_ST, L_RB = 0, 28672, 36864, 37888
sW, sXCC, sRANK, sLAYER, sTEAM, sGRP, sRHO, _s27, sSEG, sN, sTB, sBIG = range(20, 32)
sXA, sPART, sFLW, sFLR, sRD, sOUT, sT0, sT1, sXSO = 32, 33, 34, 35, 48, 49, 58, 59, 50
sM56 = 68
sPH, sROW, sLP, sXL = 64, 65, 66, 67
NEG = 220
XR0 = 228
TGA = 173
sDIR = 71
sXK = lambda k: 91 + k
sTAG = 27
LANE16, XW_, XR, HW_, STW, STR, PST, LANE4, RESA, TMP, RBW, RBR, ONE2, SELLO, SELHI = range(1, 16)
B1, CS, B2 = 16, 24, 32
MF = 'v_mfma_f32_16x16x32_bf16'
W1 = lambda tt, t, n=4: a(tt * 56 + t * 4, n)
W2 = lambda ct, ks, n=4: a(112 + (ct * 4 + ks) * 4, n)

def wavesum(A, rs, t):
    for m in ('quad_perm:[1,0,3,2]', 'quad_perm:[2,3,0,1]', 'row_half_mirror', 'row_mirror'):
        for r in rs: A(f'v_add_f32_dpp v{r}, v{r}, v{r} {m} row_mask:0xf bank_mask:0xf')
    for r in rs: xg(A, 'v_add_f32', r, t)

OPT = dict(ga=2.6, gb=1.6)
def gen_mlp(A, opts):
    for o in opts:
        k, _, x = o.partition('=')
        if k in OPT: OPT[k] = float(x)
    st = Stamps(A, opts, 'mst')
    st.init()
    A(f"""
    s_lshr_b32 s{sGRP}, s{sRANK}, 4
    s_and_b32 s{sRHO}, s{sRANK}, 15
    s_mov_b32 s{sSEG}, s{sGRP}
    s_mov_b32 s{sN}, 0
    s_mov_b32 s{sM56}, -1
    s_mov_b32 s{sM56+1}, 0x00ffffff
    s_lshl_b32 s{sFLR}, s{sGRP}, 8
    s_add_u32 s{sFLR}, s{sFLR}, s{sTB}
    s_add_u32 s{sFLR}, s{sFLR}, {T_FL}
    s_lshl_b32 s{sT0}, s{sRHO}, 2
    s_add_u32 s{sT0}, s{sT0}, s{sW}
    s_lshl_b32 s{sT0}, s{sT0}, 2
    s_add_u32 s{sFLW}, s{sFLR}, s{sT0}
    s_mul_i32 s{sT0}, s{sGRP}, {2*PART_SLOT}
    s_add_u32 s{sBIG}, s{sBIG}, s{sT0}
    s_add_u32 s{sT0}, s6, {XB}
    s_addc_u32 s{sT1}, s7, 0
    s_cmp_eq_u32 s{sLAYER}, 0
    s_cselect_b32 s12, s{sT0}, s44
    s_cselect_b32 s13, s{sT1}, s45
    s_mov_b32 s14, {XBYTES}
    s_mov_b32 s15, 0x20000
    v_and_b32 v48, 15, v0                   ; n
    v_lshrrev_b32 v49, 4, v0                ; g
    s_lshl_b32 s{sT0}, s{sW}, 10
    v_add_u32 v{XW_}, s{sT0}, v{LANE16}
    v_lshrrev_b32 v50, 1, v49
    v_lshlrev_b32 v50, 10, v50
    v_and_b32 v51, 1, v49
    v_lshl_add_u32 v50, v51, 8, v50
    v_lshl_add_u32 v{XR}, v48, 4, v50
    s_lshl_b32 s{sT0}, s{sW}, 11
    v_add_u32 v{HW_}, s{sT0}, v{LANE16}
    v_lshrrev_b32 v50, 5, v0
    v_lshlrev_b32 v50, 9, v50
    v_lshl_add_u32 v{STR}, v48, 4, v50
    s_lshl_b32 s{sT0}, s{sW}, 2
    v_add_u32 v{STW}, s{sT0}, v{LANE16}
    v_lshlrev_b32 v50, 12, v49
    v_lshl_add_u32 v50, v48, 4, v50
    s_lshl_b32 s{sT0}, s{sW}, 8
    v_add_u32 v{PST}, s{sT0}, v50
    v_lshlrev_b32 v{LANE4}, 2, v0
    s_and_b32 s{sT0}, s{sW}, 1
    s_cmp_ge_u32 s{sRHO}, 14
    s_cselect_b32 s{sDIR}, 2, s{sT0}
    s_lshl_b32 s60, s{sT0}, 4
    s_add_u32 s60, s60, s{sRHO}             ; token
    s_mul_i32 s{sLP}, s{sRHO}, 37
    s_lshr_b32 s{sLP}, s{sLP}, 8
    s_mul_i32 s{sLP}, s{sLP}, 7
    s_sub_u32 s{sLP}, s{sRHO}, s{sLP}
    s_lshr_b32 s{sPH}, s{sW}, 1
    s_mul_i32 s{sROW}, s60, 896
    s_lshl_b32 s{sRD}, s60, 10
    s_mul_i32 s{sT1}, s{sPH}, {7*32768}
    s_add_u32 s{sRD}, s{sRD}, s{sT1}
    s_mul_i32 s{sT0}, s{sT0}, 1792
    s_add_u32 s{sT0}, s{sT0}, {L_RB}
    v_lshlrev_b32 v50, 5, v0
    v_add_u32 v{RBR}, s{sT0}, v50
    v_mul_u32_u24 v50, 112, v49
    v_add_lshl_u32 v50, v50, v48, 2
    s_mul_i32 s{sT0}, s{sW}, 1792
    s_add_u32 s{sT0}, s{sT0}, {L_RB}
    v_add_u32 v{RBW}, s{sT0}, v50
    v_lshrrev_b32 v51, 1, v0
    v_lshlrev_b32 v51, 10, v51
    v_and_b32 v52, 1, v0
    v_lshl_add_u32 v51, v52, 8, v51
    s_lshr_b32 s{sT1}, s60, 4
    s_lshl_b32 s{sT1}, s{sT1}, 9
    s_and_b32 s62, s60, 15
    s_lshl_b32 s62, s62, 4
    s_add_u32 s{sT1}, s{sT1}, s62
    v_add_u32 v51, s{sT1}, v51
    v_mov_b32 v52, 0x40000000
    v_cndmask_b32 v{RESA}, v52, v51, s[{sM56}:{sM56+1}]
    v_lshrrev_b32 v51, 2, v0
    v_min_u32 v51, 6, v51
    v_lshlrev_b32 v51, 15, v51
    v_and_b32 v52, 3, v0
    v_lshl_add_u32 v51, v52, 8, v51
    v_add_u32 v{TGA}, 252, v51
    v_mov_b32 v{ONE2}, 0x3f803f80
    v_mov_b32 v{SELLO}, 0x3f80
    v_mov_b32 v{SELHI}, 0x3f800000
    """)
    srd(A, 16, 42, 896)
    A(f'buffer_load_dwordx4 v[40:43], v{LANE16}, s[16:19], 0 offen')
    for r in range(NEG, NEG + 4): A(f'v_mov_b32 v{r}, 0')
    A(f's_add_u32 s{sT0}, s{sBIG}, s{sRD}')
    for k in range(14):
        A(f'buffer_store_dwordx4 {v(NEG,4)}, v{LANE16}, s[8:11], s{sT0} offen')
        A(f's_add_u32 s{sT0}, s{sT0}, {32768 if k != 6 else PART_SLOT - 6*32768}')
    A(f"""
    s_waitcnt vmcnt(0)
    v_mov_b32 v{TMP}, 1
    s_mov_b64 exec, 1
    buffer_store_dword v{TMP}, off, s[8:11], s{sFLW}
    s_mov_b64 exec, -1
    """)
    for d in range(4):
        A(f'v_lshlrev_b32 v{B2+2*d}, 16, v{40+d}\nv_and_b32 v{B2+2*d+1}, 0xffff0000, v{40+d}')
    c1 = -2 * math.sqrt(2 / math.pi) * math.log2(math.e)
    consts = f's_mov_b32 s60, {fbits(1/448)}\ns_mov_b32 s61, {fbits(1e-5)}\ns_mov_b32 s62, {fbits(c1*0.044715)}\ns_mov_b32 s63, {fbits(c1)}'
    A(f"""
    s_mul_i32 s{sT0}, s{sSEG}, 28672
    s_mul_i32 s{sXA}, s{sLAYER}, {XBYTES}
    s_add_u32 s{sXA}, s{sXA}, s{sT0}
    s_add_u32 s{sXA}, s{sXA}, {XA}
    {consts}
    """)
    A(f's_cmp_ge_u32 s{sRHO}, 14\ns_cbranch_scc1 LM_job')
    srd(A, 16, 36, 448 * 3584)
    A(f"""
    v_mul_u32_u24 v50, 3584, v49
    v_lshl_add_u32 v50, v48, 4, v50
    s_mul_i32 s62, s{sW}, {112*3584}
    s_lshl_b32 s{sT0}, s{sRHO}, 8
    s_add_u32 s62, s62, s{sT0}
    s_mul_i32 s63, s{sW}, {112*256}
    s_mov_b32 m0, s63
    """)
    for k in range(28):
        A('buffer_load_dwordx4 v50, s[16:19], s62 offen lds')
        if k < 27: A(f's_add_u32 s62, s62, {4*3584}\ns_add_u32 m0, m0, 1024')
    srd(A, 16, 38, 3584)
    A(f"""
    s_lshl_b32 s{sT1}, s{sW}, 6
    s_add_u32 s{sT0}, s{sT0}, s{sT1}
    v_lshlrev_b32 v50, 4, v49
    buffer_load_dwordx4 v[40:43], v50, s[16:19], s{sT0} offen
    v_bfe_u32 v51, v0, 2, 2                 ; r
    v_lshl_add_u32 v51, v49, 3, v51         ; 8g + r
    v_and_b32 v52, 3, v0                    ; cc
    v_lshlrev_b32 v53, 8, v51
    v_lshl_add_u32 v53, v52, 4, v53
    v_add_u32 v53, s{sT1}, v53
    v_add_u32 v54, 0xe000, v53
    s_waitcnt vmcnt(0)
    s_barrier
    """)
    for d in range(4):
        A(f'v_lshlrev_b32 v{B1+2*d}, 16, v{40+d}\nv_and_b32 v{B1+2*d+1}, 0xffff0000, v{40+d}')
    for t in range(14):
        for tt in range(2):
            for z in range(2):
                o = t * 8192 + z * 1024 + tt * 8
                base = 53 if t < 7 else 54
                A(f'ds_read_b64_tr_b16 {a(tt*56+t*4+2*z,2)}, v{base} offset:{o - (0 if t < 7 else 0xe000)}')
    barrier(A)
    srd(A, 16, 40, 1792 * 896)
    A(f"""
    s_mul_i32 s62, s{sRHO}, {128*896}
    s_add_u32 s62, s62, s63
    s_mov_b32 m0, s63
    """)
    for k in range(28):
        A(f'buffer_load_dwordx4 v{LANE16}, s[16:19], s62 offen lds')
        if k < 27: A(f's_add_u32 s62, s62, 1024\ns_add_u32 m0, m0, 1024')
    for r in range(40, 44): A(f'v_mov_b32 v{r}, v{ONE2}')
    for t in range(14):
        for tt in range(2):
            A(f'{MF} {v(CS+4*tt,4)}, {W1(tt,t)}, v[40:43], {"0" if t == 0 else v(CS+4*tt,4)}')
    A(f"""
    v_mul_u32_u24 v53, 896, v51
    s_mul_i32 s{sT0}, s{sW}, 224
    v_add_u32 v53, s{sT0}, v53
    v_lshl_add_u32 v53, v52, 3, v53
    v_add_u32 v54, {64*896}, v53
    s_waitcnt vmcnt(0)
    s_barrier
    """)
    for ks in range(4):
        for ct in range(7):
            for z in range(2):
                o = (ks & 1) * 32 * 896 + z * 4 * 896 + ct * 32
                base = 53 + (ks >> 1)
                A(f'ds_read_b64_tr_b16 {a(112+(ct*4+ks)*4+2*z,2)}, v{base} offset:{o}')
    barrier(A)

    A(consts)
    ld = lambda k: f'buffer_load_dwordx4 {v(XR0+4*k,4)}, v{XW_}, s[8:11], s{sXK(k)} offen sc1'
    xoff = lambda add: [f's_add_u32 s{sXK(k)}, s{sXA}, {add + k*4096}' for k in range(7)]
    for t in xoff(0) + [ld(k) for k in range(7)]: A(t)
    if 'dbg' in opts: A('s_memrealtime s[82:83]\ns_waitcnt lgkmcnt(0)')
    A('s_waitcnt vmcnt(0)')
    A('LM_job:')
    st('job')
    RESV = 168
    resld = f'buffer_load_dwordx4 {v(RESV,4)}, v{RESA}, s[8:11], s{sXA} offen sc1'
    offs = f"""s_mul_i32 s{sT0}, s{sSEG}, 28672
    s_add_u32 s{sOUT}, s{sT0}, s{sROW}
    s_add_u32 s{sXSO}, s{sOUT}, {XS1}
    s_and_b32 s{sT0}, s{sN}, 1
    s_mul_i32 s{sPART}, s{sT0}, {PART_SLOT}
    s_add_u32 s{sPART}, s{sPART}, s{sBIG}
    s_lshl_b32 s{sT0}, s{sRHO}, 15
    s_add_u32 s98, s{sPART}, s{sT0}
    s_add_u32 s99, s98, 16384
    s_add_u32 s{sTAG}, s{sN}, 128
    s_lshl_b32 s{sTAG}, s{sTAG}, 16
    s_add_u32 s51, s{sPART}, s{sRD}""".split('\n') + [f's_add_u32 s{51+k}, s51, {k*32768}' for k in range(1, 7)]
    def flag():
        A(f"""
        s_add_u32 s{sT0}, s{sN}, 1
        v_mov_b32 v{TMP}, s{sT0}
        s_mov_b64 exec, 1
        buffer_store_dword v{TMP}, off, s[8:11], s{sFLW}
        s_mov_b64 exec, -1
        """)
    A(f's_cmp_lt_u32 s{sRHO}, 14\ns_cbranch_scc1 LM_gemm')
    for t in offs: A(t)
    poll(A, [resld], regs(RESV, 4), TMP, sleep=4)
    flag()
    A('s_barrier\ns_branch LM_red')
    A('LM_xchk:')
    check(A, regs(XR0, 28), TMP)
    A(f's_cbranch_vccz LM_xok\nLM_xgap:\ns_lshl_b32 s{sXL}, s{sLP}, 12\ns_add_u32 s{sXL}, s{sXL}, s{sXA}\nLM_xlight:')
    A(f'buffer_load_dwordx4 {v(XR0,4)}, v{XW_}, s[8:11], s{sXL} offen sc1')
    A(f's_add_u32 s{SCNT}, s{SCNT}, 1\ns_cmp_gt_u32 s{SCNT}, {TIMEOUT}\ns_cbranch_scc1 Lfail')
    check(A, regs(XR0, 4), TMP)
    A('s_cbranch_vccnz LM_xlight')
    for k in range(7): A(ld(k))
    def xproc():
        for k in range(7):
            A(f'ds_write_b128 v{XW_}, {v(XR0+4*k,4)} offset:{L_X + k*4096}')
            for r in range(XR0 + 4 * k, XR0 + 4 + 4 * k):
                A(f'v_dot2_f32_bf16 v40, v{r}, v{ONE2}, {"0" if r == XR0 else "v40"}')
                A(f'v_dot2_f32_bf16 v41, v{r}, v{r}, {"0" if r == XR0 else "v41"}')
        A('v_cmp_u_f32 vcc, v40, v41\ns_cbranch_vccnz LM_xchk')
    xproc()
    A(f's_branch LM_xok\nLM_gemm:\ns_mov_b32 s{SCNT}, 0')
    A(f's_waitcnt vmcnt({1 + st.on})\nv_cmp_eq_u32 vcc, -1, v{XR0+27}\ns_cbranch_vccnz LM_xgap')
    st('xw')
    xproc()
    A(f"""
    LM_xok:
    s_nop 1
    v_permlane16_swap_b32 v40, v41
    v_add_f32 v40, v40, v41
    ds_write_b32 v{STW}, v40 offset:{L_ST}
    """)
    barrier(A)
    st('b1')
    acc = lambda tt, mt: 48 + (mt * 2 + tt) * 4
    NR = 5
    fr = lambda i: 144 + (i % NR) * 4
    rd = lambda i: f'ds_read_b128 {v(fr(i),4)}, v{XR} offset:{L_X + (i % 14)*2048 + (i // 14)*512}'
    A(rd(0)); A(rd(1))
    for k in range(2): A(f'ds_read_b128 {v(64+4*k,4)}, v{STR} offset:{L_ST + k*256}')
    A(rd(2)); A(rd(3))
    A(resld)
    def g1ops(mt):
        ops = []
        for t in range(14):
            i = mt * 14 + t
            for tt in range(2):
                m = f'{MF} {v(acc(tt,mt),4)}, {W1(tt,t)}, {v(fr(i),4)}, {"0" if t == 0 else v(acc(tt,mt),4)}'
                x = [m]
                if tt == 0 and i + 4 < 28: x.append(rd(i + 4))
                ops.append(x)
        return ops
    S, Q = 64, 68
    stat = f"""v_add_f32 v{S}, v{S}, v{S+1}
    v_add_f32 v{Q}, v{Q}, v{Q+1}
    v_add_f32 v{S+2}, v{S+2}, v{S+3}
    v_add_f32 v{Q+2}, v{Q+2}, v{Q+3}
    v_add_f32 v{S}, v{S}, v{S+2}
    v_add_f32 v{Q}, v{Q}, v{Q+2}
    v_mul_f32 v{S}, s60, v{S}
    v_mul_f32 v{Q}, s60, v{Q}
    v_fma_f32 v{Q}, -v{S}, v{S}, v{Q}
    v_max_f32 v{Q}, 0, v{Q}
    v_add_f32 v44, s61, v{Q}
    v_rsq_f32 v44, v44
    v_mul_f32 v{Q}, v{Q}, v44
    v_fma_f32 v{Q}, v{Q}, v44, s61
    v_rsq_f32 v{Q}, v{Q}
    v_mov_b32 v42, s63
    v_mov_b32 v43, s62
    v_mul_f32 v44, v44, v{Q}
    v_mul_f32 v45, -v{S}, v44
    v_mov_b32 v46, v44
    v_mov_b32 v47, v45
    buffer_load_dword v172, v{LANE4}, s[8:11], s{sFLR} offen sc1
    v_permlane32_swap_b32 v44, v46
    v_permlane32_swap_b32 v45, v47""".split('\n')
    def gelu(mt):
        RS, NM = 44 + 2 * mt, 45 + 2 * mt
        el = [(acc(tt, mt) + r, 80 + 8 * mt + tt * 4 + r, tt * 4 + r) for tt in range(2) for r in range(4)]
        pre = [f'v_fma_f32 v{t}, v{NM}, v{CS+k}, v{B1+k}' for x, t, k in el]
        o = []
        for x, t, k in el: o.append(f'v_fma_f32 v{x}, v{x}, v{RS}, v{t}')
        for x, t, k in el: o.append(f'v_mul_f32 v{t}, v{x}, v{x}')
        for x, t, k in el: o.append(f'v_fma_f32 v{t}, v{t}, s62, v42')
        for x, t, k in el: o.append(f'v_mul_f32 v{t}, v{t}, v{x}')
        if mt == 1:
            pe = el[::2]
            o = [f'v_pk_fma_f32 {v(x,2)}, {v(x,2)}, {v(RS,2)}, {v(t,2)} op_sel_hi:[1,0,1]' for x, t, k in pe]
            o += [f'v_pk_mul_f32 {v(t,2)}, {v(x,2)}, {v(x,2)}' for x, t, k in pe]
            o += [f'v_pk_fma_f32 {v(t,2)}, {v(t,2)}, v[42:43], v[42:43] op_sel:[0,1,0] op_sel_hi:[1,1,0]' for x, t, k in pe]
            o += [f'v_pk_mul_f32 {v(t,2)}, {v(t,2)}, {v(x,2)}' for x, t, k in pe]
        ex = [f'v_exp_f32 v{t}, v{t}' for x, t, k in el]
        ad = [f'v_add_f32 v{t}, 1.0, v{t}' for x, t, k in el]
        rc = [f'v_rcp_f32 v{t}, v{t}' for x, t, k in el]
        mu = [f'v_mul_f32 v{x}, v{x}, v{t}' for x, t, k in el]
        for k in range(8):
            o.append(ex[k])
            if k >= 1: o.append(ad[k - 1])
        o.append(rc[0]); o.append(ad[7])
        for k in range(1, 8):
            o.append(rc[k]); o.append(mu[k - 1])
        hb = 108 + 4 * mt
        o.append(f'v_cvt_pk_bf16_f32 v{hb}, v{acc(0,mt)}, v{acc(0,mt)+1}')
        o.append(mu[7])
        for q in range(1, 4): o.append(f'v_cvt_pk_bf16_f32 v{hb+q}, v{acc(0,mt)+2*q}, v{acc(0,mt)+2*q+1}')
        o.append(f'ds_write_b128 v{HW_}, {v(hb,4)} offset:{L_H + mt*1024}')
        return pre, o
    p0, ga = gelu(0); p1, gb = gelu(1)
    va = stat + p0 + p1
    o = list(offs)
    ops = g1ops(0)
    weave(A, ops[:4], o, 2)
    weave(A, ops[4:], va, 2)
    assert not va
    st('g1a')
    ops = g1ops(1)
    weave(A, ops[:2], o, 5); assert not o
    weave(A, ops[2:], ga, OPT['ga'])
    st('g1b')
    take(A, ga, 99)
    take(A, gb, 18)
    A(f'v_cmp_gt_i32 vcc, s{sN}, v172\ns_cbranch_vccnz LM_flw\nLM_flok:')
    barrier(A)
    st('h0')
    hf = lambda ks, mt: (64 if mt == 0 else 176) + ks * 4
    hrd = lambda mt: [f'ds_read_b128 {v(hf(ks,mt),4)}, v{LANE16} offset:{L_H + ks*2048 + mt*1024}' for ks in range(4)]
    for t in hrd(0): A(t)
    take(A, gb, 8)
    ac2 = lambda ct, mt: (116 if mt == 0 else 192) + ct * 4
    g2ops = lambda mt: [f'{MF} {v(ac2(ct,mt),4)}, {v(hf(ks,mt),4)}, {W2(ct,ks)}, {"0" if ks == 0 else v(ac2(ct,mt),4)}' for ks in range(4) for ct in range(7)]
    ops = g2ops(0)
    weave(A, ops[:18], gb, OPT['gb'])
    take(A, gb, 99)
    A(ops[18])
    flag()
    for t in ops[19:23]: A(t)
    st('g2a')
    barrier(A)
    st('h1')
    weave(A, ops[23:], hrd(1), 1)
    def outs(mt):
        o = []
        for r in range(4):
            d = 144 + r * 4
            for p in range(3):
                o.append(f'v_cvt_pk_bf16_f32 v{d+p}, v{ac2(2*p,mt)+r}, v{ac2(2*p+1,mt)+r}')
            o.append(f'v_cvt_pk_bf16_f32 v{d+3}, v{ac2(6,mt)+r}, s{sTAG}')
            o.append(f'buffer_store_dwordx4 {v(d,4)}, v{PST}, s[8:11], s{98+mt} offen offset:{r*1024}')
        return o
    oa = outs(0)
    weave(A, g2ops(1), oa, 1, start=1)
    assert not oa
    st('g2b')
    take(A, outs(1), 99)
    st('red')
    pl = lambda k: f'buffer_load_dwordx4 {v(64+4*k,4)}, v{LANE16}, s[8:11], s{51+k} offen sc1'
    A('LM_red:')
    Y = 96
    for d in range(4):
        A(f'v_lshlrev_b32 v{Y+2*d}, 16, v{RESV+d}\nv_and_b32 v{Y+2*d+1}, 0xffff0000, v{RESV+d}')
    for d in range(4): A(f'v_pk_add_f32 {v(Y+2*d,2)}, {v(Y+2*d,2)}, {v(B2+2*d,2)}')
    A('v_mov_b32 v40, 0\nv_mov_b32 v41, 0')
    for t in xoff(2 * 28672): A(t)
    A(f's_mov_b32 s{SCNT}, 0\ns_cmp_eq_u32 s{sDIR}, 0\ns_cbranch_scc1 LM_pfull\ns_waitcnt vmcnt(0)\ns_cmp_eq_u32 s{sDIR}, 1\ns_cbranch_scc1 LM_pfull\nLM_plight:')
    A(f'buffer_load_dword v64, v{TGA}, s[8:11], s51 offen sc1')
    A(f's_add_u32 s{SCNT}, s{SCNT}, 1\ns_cmp_gt_u32 s{SCNT}, {TIMEOUT}\ns_cbranch_scc1 Lfail')
    A(f'v_cmp_gt_u32 vcc, s{sTAG}, v64\ns_cbranch_vccnz LM_plight\nLM_pfull:')
    for k in range(7): A(pl(k))
    X = 48
    for k in range(7):
        for ct in range(7):
            A(f'v_dot2_f32_bf16 v{X+ct}, v{64+4*k+(ct>>1)}, v{SELHI if ct & 1 else SELLO}, {"0" if k == 0 else f"v{X+ct}"}')
    A(f"""
    v_min3_u32 v56, v67, v71, v75
    v_min3_u32 v56, v56, v79, v83
    v_min3_u32 v56, v56, v87, v91
    v_cmp_gt_u32 vcc, s{sTAG}, v56
    s_cbranch_vccnz LM_plight
    """)
    st('pok')
    for p in range(3): A(f'ds_write2_b32 v{RBW}, v{X+2*p}, v{X+2*p+1} offset0:{32*p} offset1:{32*p+16}')
    A(f'ds_write_b32 v{RBW}, v{X+6} offset:384')
    barrier(A)
    st('rb')
    A(f's_mov_b64 exec, s[{sM56}:{sM56+1}]')
    for q in range(4): A(f'ds_read_b128 {v(104+4*q,4)}, v{RBR} offset:{(q>>1)*3584 + (q&1)*16}')
    for q in range(4):
        for p in range(2): A(f'v_pk_add_f32 {v(Y+4*(q&1)+2*p,2)}, {v(Y+4*(q&1)+2*p,2)}, {v(104+4*q+2*p,2)}')
    A(f's_cmp_eq_u32 s{sPH}, 0\ns_cbranch_scc0 LM_ln')
    for d in range(4): A(f'v_cvt_pk_bf16_f32 v{104+d}, v{Y+2*d}, v{Y+2*d+1}')
    pf = '\n'.join(['s_mov_b64 exec, -1'] + [ld(k) for k in range(7)])
    A(f"""
    s_cmp_eq_u32 s{sLAYER}, 0
    s_cbranch_scc1 LM_xb
    buffer_store_dwordx4 v[104:107], v{LANE16}, s[12:15], s{sOUT} offen
    LM_idle:
    {pf}
    s_waitcnt vmcnt(0)
    s_branch LM_next
    LM_xb:
    {pf}
    s_mov_b64 exec, s[{sM56}:{sM56+1}]
    s_waitcnt vmcnt(0)
    buffer_store_dwordx4 v[104:107], v{LANE16}, s[12:15], s{sOUT} offen sc1
    s_branch LM_next
    LM_ln:
    s_cmp_eq_u32 s{sLAYER}, 0
    s_cbranch_scc0 LM_idle
    v_pk_add_f32 v[104:105], {v(Y,2)}, {v(Y+2,2)}
    v_pk_mul_f32 v[106:107], {v(Y,2)}, {v(Y,2)}
    v_pk_add_f32 v[104:105], v[104:105], {v(Y+4,2)}
    v_pk_fma_f32 v[106:107], {v(Y+2,2)}, {v(Y+2,2)}, v[106:107]
    v_pk_add_f32 v[104:105], v[104:105], {v(Y+6,2)}
    v_pk_fma_f32 v[106:107], {v(Y+4,2)}, {v(Y+4,2)}, v[106:107]
    v_add_f32 v40, v104, v105
    v_pk_fma_f32 v[106:107], {v(Y+6,2)}, {v(Y+6,2)}, v[106:107]
    v_add_f32 v41, v106, v107
    s_mov_b64 exec, -1
    {ld(0)}
    v_permlane16_swap_b32 v40, v41
    v_add_f32 v40, v40, v41
    v_mov_b32 v41, v40
    {ld(1)}
    v_permlane32_swap_b32 v40, v41
    v_add_f32 v40, v40, v41
    """)
    for i, k in enumerate((8, 4, 2, 1)): A(ld(2 + i) + f'\nv_add_f32_dpp v40, v40, v40 row_ror:{k} row_mask:0xf bank_mask:0xf')
    A(f"""
    v_mul_f32 v40, s60, v40
    v_readlane_b32 s{sT0}, v40, 0
    v_readlane_b32 s{sT1}, v40, 16
    {ld(6)}
    v_mov_b32 v42, s{sT0}
    v_fma_f32 v40, -v42, v42, s{sT1}
    v_max_f32 v40, 0, v40
    v_add_f32 v40, s61, v40
    v_rsq_f32 v40, v40
    """)
    for d in range(4): A(f'v_pk_add_f32 {v(Y+2*d,2)}, {v(Y+2*d,2)}, v[42:43] op_sel_hi:[1,0] neg_lo:[0,1] neg_hi:[0,1]')
    for d in range(4): A(f'v_pk_mul_f32 {v(Y+2*d,2)}, {v(Y+2*d,2)}, v[40:41] op_sel_hi:[1,0]')
    for d in range(4): A(f'v_cvt_pk_bf16_f32 v{104+d}, v{Y+2*d}, v{Y+2*d+1}')
    A(f"""
    s_mov_b64 exec, s[{sM56}:{sM56+1}]
    buffer_store_dwordx4 v[104:107], v{LANE16}, s[8:11], s{sXSO} offen sc1
    LM_next:
    s_mov_b64 exec, -1
    """)
    st('end')
    st.flush(TMP, LANE4)
    A(f"""
    s_add_u32 s{sSEG}, s{sSEG}, 2
    s_add_u32 s{sN}, s{sN}, 1
    s_add_u32 s{sXA}, s{sXA}, {2*28672}
    s_cmp_lt_u32 s{sSEG}, {3 if 'one' in opts else 64}
    s_cbranch_scc1 LM_job
    s_branch Ldone
    """)
    A('LM_flw:')
    poll(A, [f'buffer_load_dword v172, v{LANE4}, s[8:11], s{sFLR} offen sc1'], None, None, cmp=f'v_cmp_gt_i32 vcc, s{sN}, v172')
    A('s_branch LM_flok')
```

```python
from asmlib import *
from layout import *
import math, struct

def fbits(x): return '0x%08x' % struct.unpack('<I', struct.pack('<f', x))[0]

def srd(A, d, base, nbytes, add=0):
    if add:
        A(f's_add_u32 s{d}, s{base}, {add}\ns_addc_u32 s{d+1}, s{base+1}, 0')
    else:
        A(f's_mov_b32 s{d}, s{base}\ns_mov_b32 s{d+1}, s{base+1}')
    A(f's_mov_b32 s{d+2}, {nbytes}\ns_mov_b32 s{d+3}, 0x20000')

def red8(A, op, r, t):
    for m in ('quad_perm:[1,0,3,2]', 'quad_perm:[2,3,0,1]', 'row_half_mirror'):
        A(f'{op}_dpp {v(r)}, {v(r)}, {v(r)} {m} row_mask:0xf bank_mask:0xf')

def gen_prep(A, opts=()):
    WSZ = 448 * 8192
    A(f"""
    s_cmp_ge_u32 s2, 256
    s_cbranch_scc1 Lp_end
    s_load_dwordx8 s[4:11], s[0:1], 0
    s_load_dwordx4 s[12:15], s[0:1], 32
    s_load_dwordx2 s[16:17], s[0:1], 112
    v_lshrrev_b32 v2, 6, v0
    v_and_b32 v1, 63, v0
    v_readfirstlane_b32 s20, v2
    s_and_b32 s21, s2, 7
    s_lshr_b32 s22, s2, 3
    v_lshlrev_b32 v6, 4, v0
    v_mov_b32 v8, -1
    v_mov_b32 v9, -1
    v_mov_b32 v10, -1
    v_mov_b32 v11, -1
    s_lshl_b32 s23, s2, 12
    s_add_u32 s23, s23, {CLR0}
    s_waitcnt lgkmcnt(0)
    """)
    srd(A, 24, 16, WS_USED)
    def clears():
        for k in range(CLR_PER_THREAD):
            A(f'buffer_store_dwordx4 v[8:11], v6, s[24:27], s23 offen sc1')
            if k + 1 < CLR_PER_THREAD: A(f's_add_u32 s23, s23, {256*4096}')
    A(f"""
    s_cmp_ge_u32 s22, 28
    s_cbranch_scc1 Lp_misc
    s_mul_i32 s40, s22, 37
    s_lshr_b32 s40, s40, 8          ; slot/7
    s_mul_i32 s41, s40, 7
    s_sub_u32 s41, s22, s41         ; b
    s_lshl_b32 s42, s21, 2
    s_add_u32 s42, s42, s40         ; pair 0..31
    s_and_b32 s43, s42, 1           ; mat
    s_lshr_b32 s42, s42, 1          ; h
    s_cmp_eq_u32 s43, 0
    s_cselect_b32 s28, s10, s12
    s_cselect_b32 s29, s11, s13
    s_mov_b32 s30, {WSZ}
    s_mov_b32 s31, 0x20000
    s_cselect_b32 s32, s8, s14
    s_cselect_b32 s33, s9, s15
    s_mov_b32 s34, {WSZ}
    s_mov_b32 s35, 0x20000
    v_lshrrev_b32 v2, 5, v1
    v_and_b32 v3, 31, v1
    v_xor_b32 v3, v3, v2
    v_lshlrev_b32 v3, 4, v3
    v_lshl_add_u32 v3, v2, 13, v3
    s_lshl_b32 s44, s42, 9          ; h*512
    s_cmp_eq_u32 s43, 0
    s_cbranch_scc0 Lp_colB
    """)
    A(f"""
    s_and_b32 s45, s20, 1
    s_lshl_b32 s45, s45, 7
    v_xor_b32 v4, s45, v3
    s_lshl_b32 s46, s41, 6
    s_lshl_b32 s47, s20, 4
    s_add_u32 s46, s46, s47
    s_lshl_b32 s46, s46, 13
    s_add_u32 s46, s46, s44         ; (64b+16w)*8192 + h*512
    s_lshl_b32 s47, s20, 13
    s_mov_b32 m0, s47
    """)
    for k in range(8):
        xc = ((2 * (k & 1)) | ((k >> 2) << 2)) * 16
        A(f'v_xor_b32 v5, {xc}, v4')
        A(f'buffer_load_dwordx4 v5, s[32:35], s46 offen lds')
        if k < 7: A(f's_add_u32 s46, s46, 16384\ns_add_u32 m0, m0, 1024')
    A(f"""
    s_mul_i32 s48, s42, 28
    s_lshl_b32 s49, s41, 2
    s_add_u32 s48, s48, s49
    s_mul_i32 s48, s48, 14336
    s_add_u32 s48, s48, {WA}
    s_mov_b32 s49, 14336
    s_mov_b32 s50, {fbits(256 ** -0.5 * math.log2(math.e))}
    s_branch Lp_rows
    Lp_colB:
    v_lshrrev_b32 v2, 3, v1
    v_mul_u32_u24 v2, 896, v2
    v_and_b32 v4, 7, v1
    v_bfe_u32 v5, v1, 4, 1
    v_lshlrev_b32 v5, 1, v5
    v_xor_b32 v4, v4, v5
    v_xor_b32 v5, 4, v4
    v_lshl_add_u32 v4, v4, 4, v2
    v_lshl_add_u32 v5, v5, 4, v2
    s_mul_i32 s46, s42, 229376
    s_mul_i32 s47, s20, {64*896}
    s_add_u32 s46, s46, s47
    s_lshl_b32 s47, s41, 7
    s_add_u32 s46, s46, s47
    s_lshl_b32 s47, s20, 13
    s_mov_b32 m0, s47
    """)
    for k in range(8):
        A(f'buffer_load_dwordx4 v{4 + (k & 1)}, s[32:35], s46 offen lds')
        if k < 7: A(f's_add_u32 s46, s46, {8*896}\ns_add_u32 m0, m0, 1024')
    A(f"""
    s_lshl_b32 s48, s41, 6
    s_add_u32 s48, s48, s42
    s_mul_i32 s48, s48, 14336
    s_add_u32 s48, s48, {WB}
    s_mov_b32 s49, {16*14336}
    s_mov_b32 s50, 1.0
    Lp_rows:
    s_lshl_b32 s51, s20, 18
    s_add_u32 s51, s51, s44         ; w*32*8192 + h*512
    s_lshl_b32 s52, s20, 15
    s_add_u32 s52, s52, 32768
    s_lshl_b32 s53, s20, 10
    s_add_u32 s48, s48, s53         ; + t*1024
    """)
    def panel(slot):
        A(f's_add_u32 m0, s52, {slot*16384}\ns_mov_b32 s46, s51')
        for i in range(16):
            xc = ((2 * (i & 1)) | ((i >> 2) << 2)) * 16
            A(f'v_xor_b32 v5, {xc}, v3')
            A(f'buffer_load_dwordx4 v5, s[28:31], s46 offen lds')
            if i < 15: A(f's_add_u32 s46, s46, 16384\ns_add_u32 m0, m0, 1024')
        A(f's_add_u32 s51, s51, {4*32*8192}')
    panel(0); panel(1)
    clears()
    A("""
    v_and_b32 v2, 15, v1
    v_lshrrev_b32 v4, 4, v1
    v_xor_b32 v5, v2, v4
    v_lshlrev_b32 v5, 4, v5
    v_lshrrev_b32 v7, 2, v2
    v_lshlrev_b32 v7, 3, v7
    v_and_b32 v2, 3, v2
    v_add_u32 v7, v7, v2
    v_lshl_add_u32 v12, v7, 9, v5
    v_xor_b32 v13, 64, v12
    v_xor_b32 v14, 128, v12
    v_xor_b32 v15, 192, v12
    v_lshlrev_b32 v6, 4, v1
    """)
    A(f"""
    s_waitcnt vmcnt({32 + CLR_PER_THREAD})
    s_barrier
    s_cmp_eq_u32 s43, 0
    s_cbranch_scc0 Lp_rdB
    """)
    C = lambda tl, es: 64 + (tl * 8 + es) * 4
    for es in range(8):
        for tl in range(4):
            A(f'ds_read_b128 {v(C(tl,es),4)}, v{12 + (es & 3)} offset:{(tl>>1)*16384 + (tl&1)*2048 + (es>>2)*256}')
    A("""
    s_branch Lp_go
    Lp_rdB:
    v_lshrrev_b32 v4, 4, v1
    v_bfe_u32 v5, v1, 2, 2
    v_lshl_add_u32 v7, v4, 3, v5
    v_lshlrev_b32 v7, 7, v7
    v_and_b32 v2, 3, v1
    v_lshl_add_u32 v7, v2, 3, v7
    v_and_b32 v4, 1, v4
    v_lshrrev_b32 v5, 1, v5
    v_lshl_add_u32 v4, v4, 1, v5
    v_lshl_add_u32 v16, v4, 5, v7
    v_xor_b32 v17, 32, v16
    v_xor_b32 v18, 64, v16
    v_xor_b32 v19, 96, v16
    """)
    for es in range(8):
        for tl in range(4):
            for z in range(2):
                A(f'ds_read_b64_tr_b16 {v(C(tl,es)+2*z,2)}, v{16+tl} offset:{es*4096 + z*512}')
    A("""
    Lp_go:
    s_waitcnt lgkmcnt(0)
    v_add_u32 v12, s52, v12
    v_add_u32 v13, s52, v13
    v_add_u32 v14, s52, v14
    v_add_u32 v15, s52, v15
    """)
    acc = lambda z, tl: 32 + (z * 4 + tl) * 4
    waits = [16 + CLR_PER_THREAD, CLR_PER_THREAD + 20, 24, 8]
    for ch in range(4):
        slot = ch & 1
        if ch == 3:
            A('s_cmp_ge_u32 s20, 2\ns_cbranch_scc1 Lp_end')
        A(f's_waitcnt vmcnt({waits[ch]})')
        F = lambda es, z: 192 + (es * 2 + z) * 4
        for es in range(8):
            for z in range(2):
                A(f'ds_read_b128 {v(F(es,z),4)}, v{12 + (es & 3)} offset:{slot*16384 + z*2048 + (es>>2)*256}')
        for es in range(8):
            for z in range(2):
                for tl in range(4):
                    c = '0' if es == 0 else v(acc(z, tl), 4)
                    A(f'v_mfma_f32_16x16x32_bf16 {v(acc(z,tl),4)}, {v(F(es,z),4)}, {v(C(tl,es),4)}, {c}')
        if ch < 2: panel(slot)
        A('s_mov_b32 s54, s48')
        for tl in range(4):
            for z in range(2):
                for r in range(4): A(f'v_mul_f32 v{acc(z,tl)+r}, s50, v{acc(z,tl)+r}')
            o = 20 + (tl & 1) * 4
            for z in range(2):
                for p in range(2):
                    A(f'v_cvt_pk_bf16_f32 v{o+2*z+p}, v{acc(z,tl)+2*p}, v{acc(z,tl)+2*p+1}')
            A(f'buffer_store_dwordx4 {v(o,4)}, v6, s[24:27], s54 offen')
            if tl < 3: A('s_add_u32 s54, s54, s49')
        A('s_add_u32 s48, s48, 4096')
    A('s_branch Lp_end')
    A('Lp_misc:')
    srd(A, 28, 4, XBYTES)
    srd(A, 32, 6, 7168)
    A(f"""
    s_sub_u32 s40, s22, 28
    s_lshl_b32 s40, s40, 3
    s_add_u32 s40, s40, s21         ; idx 0..31
    s_lshl_b32 s41, s40, 2
    s_add_u32 s41, s41, s20
    s_mul_i32 s41, s41, {16*896}
    v_lshrrev_b32 v2, 3, v1
    v_mul_u32_u24 v2, 896, v2
    v_and_b32 v3, 7, v1
    v_lshl_add_u32 v3, v3, 4, v2
    s_add_u32 s42, s41, {8*896}
    """)
    for grp in range(2):
        for tp in range(7):
            A(f'buffer_load_dwordx4 {v(16 + grp*28 + tp*4, 4)}, v3, s[28:31], s{41+grp} offen offset:{tp*128}')
    clears()
    A(f's_mov_b32 s43, 0xffff0000\ns_mov_b32 s44, {fbits(1/448)}\ns_mov_b32 s45, {fbits(1e-5)}')
    for grp in range(2):
        src = 16 + grp * 28; X = 80
        for d in range(28):
            A(f'v_lshlrev_b32 v{X+2*d}, 16, v{src+d}\nv_and_b32 v{X+2*d+1}, s43, v{src+d}')
        A(f'v_pk_add_f32 v[4:5], {v(X,2)}, {v(X+2,2)}')
        for d in range(2, 28): A(f'v_pk_add_f32 v[4:5], v[4:5], {v(X+2*d,2)}')
        A('v_add_f32 v4, v4, v5')
        red8(A, 'v_add_f32', 4, 5)
        A('v_mul_f32 v4, s44, v4')
        for d in range(28): A(f'v_pk_add_f32 {v(X+2*d,2)}, {v(X+2*d,2)}, v[4:5] op_sel_hi:[1,0] neg_lo:[0,1] neg_hi:[0,1]')
        A(f'v_pk_mul_f32 v[12:13], {v(X,2)}, {v(X,2)}')
        for d in range(1, 28): A(f'v_pk_fma_f32 v[12:13], {v(X+2*d,2)}, {v(X+2*d,2)}, v[12:13]')
        A('v_add_f32 v12, v12, v13')
        red8(A, 'v_add_f32', 12, 13)
        A('v_mov_b32 v13, s45\nv_fmac_f32 v13, s44, v12\nv_rsq_f32 v12, v13')
        for d in range(28):
            A(f'v_pk_mul_f32 {v(X+2*d,2)}, {v(X+2*d,2)}, v[12:13] op_sel_hi:[1,0]')
            A(f'v_cvt_pk_bf16_f32 v{src+d}, v{X+2*d}, v{X+2*d+1}')
            A(f'v_min_u32 v{src+d}, -2, v{src+d}')
        A(f's_add_u32 s46, s{41+grp}, {XS0}')
        for tp in range(7):
            A(f'buffer_store_dwordx4 {v(src + tp*4, 4)}, v3, s[24:27], s46 offen offset:{tp*128}')
    A(f"""
    s_cmp_lg_u32 s40, 0
    s_cbranch_scc1 Lp_home
    v_bfe_u32 v2, v1, 2, 3
    v_mul_u32_u24 v2, 224, v2
    v_and_b32 v4, 3, v1
    v_lshl_add_u32 v2, v4, 1, v2
    v_lshrrev_b32 v4, 5, v1
    v_add_u32 v2, v2, v4
    v_lshlrev_b32 v2, 2, v2
    s_lshl_b32 s41, s20, 5
    v_lshlrev_b32 v4, 2, v0
    s_mov_b32 s42, 4096
    s_mov_b32 s43, 8192
    s_mov_b32 s44, 12288
    """)
    for k in range(7):
        A(f'buffer_load_dword v{16+k}, v2, s[32:35], s41 offen offset:{k*128}')
    for k in range(7):
        A(f'v_min_u32 v{16+k}, -2, v{16+k}')
        so = ('0', 's42')[k >> 2]; so2 = ('s43', 's44')[k >> 2]
        A(f'buffer_store_dword v{16+k}, v4, s[24:27], {so} offen offset:{(k&3)*1024}')
        A(f'buffer_store_dword v{16+k}, v4, s[24:27], {so2} offen offset:{(k&3)*1024}')
    A(f"""
    Lp_home:
    s_and_b32 s41, s20, 1
    s_lshl_b32 s41, s41, 13
    s_lshr_b32 s42, s20, 1
    s_lshl_b32 s42, s42, 9
    s_add_u32 s41, s41, s42
    s_add_u32 s41, s41, 7168
    s_lshl_b32 s42, s40, 14
    s_add_u32 s41, s41, s42
    s_mov_b32 s42, -1
    v_lshlrev_b32 v2, 2, v1
    s_waitcnt vmcnt(0)
    """)
    for k in range(3):
        A("""
        s_memtime s[44:45]
        s_waitcnt lgkmcnt(0)
        buffer_store_dword v2, v2, s[24:27], s41 offen sc1
        s_waitcnt vmcnt(0)
        s_memtime s[46:47]
        s_waitcnt lgkmcnt(0)
        s_sub_u32 s43, s46, s44
        s_min_u32 s42, s42, s43
        """)
    A(f"""
    s_lshl_b32 s43, s20, 2
    v_mov_b32 v4, s43
    v_mov_b32 v5, s42
    ds_write_b32 v4, v5
    v_mov_b32 v4, 0
    s_waitcnt lgkmcnt(0)
    s_barrier
    ds_read_b128 v[8:11], v4
    s_getreg_b32 s43, hwreg(HW_REG_XCC_ID)
    s_and_b32 s43, s43, 4
    s_lshl_b32 s43, s43, 11
    v_mov_b32 v12, 0x2000
    s_lshl_b32 s44, s40, 2
    s_add_u32 s44, s44, {PAR}
    v_min_u32 v8, v8, v10
    v_min_u32 v9, v9, v11
    v_cmp_lt_u32 vcc, v9, v8
    v_cndmask_b32 v12, 0, v12, vcc
    v_xor_b32 v12, s43, v12
    """)
    if 'nopar' not in opts: A('buffer_store_dword v12, v4, s[24:27], s44 offen')
    A('Lp_end:\ns_endpgm')
```

```python
from asmlib import *
from layout import *
from prep import srd, fbits
import mlp, attn

LDS_BYTES = 155648
TIMEOUT = 1 << 17

def gen_main(A, opts):
    A(f"""
    s_cmp_ge_u32 s2, 256
    s_cbranch_scc1 Lend
    s_load_dwordx2 s[4:5], s[0:1], 0
    s_load_dwordx2 s[6:7], s[0:1], 112
    s_load_dwordx8 s[36:43], s[0:1], 64
    s_load_dwordx4 s[44:47], s[0:1], 96
    {'s_memrealtime s[86:87]' if 'dbg' in opts else ''}
    s_getreg_b32 s21, hwreg(HW_REG_XCC_ID)
    s_and_b32 s21, s21, 7
    v_lshrrev_b32 v2, 6, v0
    v_and_b32 v0, 63, v0
    v_readfirstlane_b32 s20, v2
    v_mov_b32 v3, 0
    s_waitcnt lgkmcnt(0)
    s_add_u32 s18, s6, {PAR}
    s_addc_u32 s19, s7, 0
    v_and_b32 v7, 31, v0
    v_lshlrev_b32 v7, 2, v7
    global_load_dword v7, v7, s[18:19]
    s_cmp_lg_u32 s20, 0
    s_cbranch_scc1 Lnorank
    s_lshl_b32 s22, s21, 2
    v_mov_b32 v4, s22
    v_mov_b32 v5, 1
    s_mov_b64 exec, 1
    global_atomic_add v6, v4, v5, s[46:47] sc0
    ds_write_b32 v3, v6
    s_waitcnt lgkmcnt(0)
    s_mov_b64 exec, -1
    Lnorank:
    s_barrier
    ds_read_b32 v6, v3
    """)
    srd(A, 8, 6, WS_USED)
    A(f"""
    s_lshr_b32 s23, s21, 2
    s_and_b32 s24, s21, 3
    v_lshlrev_b32 v1, 4, v0
    s_mul_i32 s30, s21, {TEAM_STRIDE}
    s_add_u32 s30, s30, {TEAMB}
    s_mul_i32 s31, s21, {BIG_STRIDE}
    s_add_u32 s31, s31, {BIG}
    v_readfirstlane_b32 s22, v6
    v_cmp_ne_u32 vcc, 0, v7
    s_bcnt1_i32_b64 s3, vcc
    s_mov_b32 s88, s3
    s_cmp_gt_u32 s3, 32
    s_cselect_b32 s3, 8192, 0
    {'s_mov_b32 s3, 0' if 'force0' in opts else 's_mov_b32 s3, 8192' if 'force1' in opts else ''}
    s_barrier
    s_cmp_ge_u32 s22, 32
    s_cbranch_scc1 Lend
    s_cmp_eq_u32 s24, 3
    s_cbranch_scc1 Lmlp
    """)
    if 'dbg' in opts:
        pass
    attn.gen_attn(A, opts)
    A('Lmlp:')
    mlp.gen_mlp(A, opts)
    A("""
    Lfail:
    s_mov_b64 exec, 1
    v_mov_b32 v2, 32
    v_mov_b32 v3, 1
    global_atomic_add v2, v3, s[46:47]
    s_endpgm
    Ldone:
    """)
    if 'dbg' in opts:
        A(f"""
        s_or_b32 s58, s22, s20
        s_cmp_lg_u32 s58, 0
        s_cbranch_scc1 Lend
        s_memrealtime s[84:85]
        s_add_u32 s18, s6, {PAR + 256}
        s_addc_u32 s19, s7, 0
        s_load_dword s59, s[18:19], 0
        s_waitcnt lgkmcnt(0)
        s_sub_u32 s84, s84, s59
        s_sub_u32 s86, s86, s59
        s_sub_u32 s82, s82, s59
        s_mov_b64 exec, 1
        s_lshl_b32 s58, s21, 2
        v_mov_b32 v2, s58
        s_lshl_b32 s84, s84, 16
        s_or_b32 s84, s84, s82
        v_mov_b32 v3, s84
        global_store_dword v2, v3, s[46:47]
        s_cmp_lg_u32 s21, 0
        s_cbranch_scc1 Lend
        v_mov_b32 v4, s88
        v_mov_b32 v5, s6
        v_mov_b32 v6, s86
        v_mov_b32 v7, s44
        global_store_dwordx4 v2, v[4:7], s[46:47] offset:48
        """)
    A('Lend:\ns_endpgm')
```

```python
from asmlib import *
from layout import *
import math, struct

def fbits(x): return '0x%08x' % struct.unpack('<I', struct.pack('<f', x))[0]

def srd(A, d, base, nbytes, add=0):
    if add:
        A(f's_add_u32 s{d}, s{base}, {add}\ns_addc_u32 s{d+1}, s{base+1}, 0')
    else:
        A(f's_mov_b32 s{d}, s{base}\ns_mov_b32 s{d+1}, s{base+1}')
    A(f's_mov_b32 s{d+2}, {nbytes}\ns_mov_b32 s{d+3}, 0x20000')

def red8(A, op, r, t):
    for m in ('quad_perm:[1,0,3,2]', 'quad_perm:[2,3,0,1]', 'row_half_mirror'):
        A(f'{op}_dpp {v(r)}, {v(r)}, {v(r)} {m} row_mask:0xf bank_mask:0xf')

def gen_prep(A, opts=()):
    WSZ = 448 * 8192
    A(f"""
    s_cmp_ge_u32 s2, 256
    s_cbranch_scc1 Lp_end
    s_load_dwordx8 s[4:11], s[0:1], 0
    s_load_dwordx4 s[12:15], s[0:1], 32
    s_load_dwordx2 s[16:17], s[0:1], 112
    v_lshrrev_b32 v2, 6, v0
    v_and_b32 v1, 63, v0
    v_readfirstlane_b32 s20, v2
    s_and_b32 s21, s2, 7
    s_lshr_b32 s22, s2, 3
    v_lshlrev_b32 v6, 4, v0
    v_mov_b32 v8, -1
    v_mov_b32 v9, -1
    v_mov_b32 v10, -1
    v_mov_b32 v11, -1
    s_lshl_b32 s23, s2, 12
    s_add_u32 s23, s23, {CLR0}
    s_waitcnt lgkmcnt(0)
    """)
    srd(A, 24, 16, WS_USED)
    if 'dbg' in opts:
        A(f"""
        s_cmp_lg_u32 s2, 0
        s_cbranch_scc1 Lp_nodbg
        s_memrealtime s[60:61]
        s_mov_b32 s62, {PAR + 256}
        s_waitcnt lgkmcnt(0)
        v_mov_b32 v20, s60
        buffer_store_dword v20, off, s[24:27], s62
        s_waitcnt vmcnt(0)
        Lp_nodbg:
        """)
    def clears():
        for k in range(CLR_PER_THREAD):
            A(f'buffer_store_dwordx4 v[8:11], v6, s[24:27], s23 offen sc1')
            if k + 1 < CLR_PER_THREAD: A(f's_add_u32 s23, s23, {256*4096}')
    A(f"""
    s_cmp_ge_u32 s22, 28
    s_cbranch_scc1 Lp_misc
    s_mul_i32 s40, s22, 37
    s_lshr_b32 s40, s40, 8          ; slot/7
    s_mul_i32 s41, s40, 7
    s_sub_u32 s41, s22, s41         ; b
    s_lshl_b32 s42, s21, 2
    s_add_u32 s42, s42, s40         ; pair 0..31
    s_and_b32 s43, s42, 1           ; mat
    s_lshr_b32 s42, s42, 1          ; h
    s_cmp_eq_u32 s43, 0
    s_cselect_b32 s28, s10, s12
    s_cselect_b32 s29, s11, s13
    s_mov_b32 s30, {WSZ}
    s_mov_b32 s31, 0x20000
    s_cselect_b32 s32, s8, s14
    s_cselect_b32 s33, s9, s15
    s_mov_b32 s34, {WSZ}
    s_mov_b32 s35, 0x20000
    v_lshrrev_b32 v2, 5, v1
    v_and_b32 v3, 31, v1
    v_xor_b32 v3, v3, v2
    v_lshlrev_b32 v3, 4, v3
    v_lshl_add_u32 v3, v2, 13, v3
    s_lshl_b32 s44, s42, 9          ; h*512
    s_cmp_eq_u32 s43, 0
    s_cbranch_scc0 Lp_colB
    """)
    A(f"""
    s_and_b32 s45, s20, 1
    s_lshl_b32 s45, s45, 7
    v_xor_b32 v4, s45, v3
    s_lshl_b32 s46, s41, 6
    s_lshl_b32 s47, s20, 4
    s_add_u32 s46, s46, s47
    s_lshl_b32 s46, s46, 13
    s_add_u32 s46, s46, s44         ; (64b+16w)*8192 + h*512
    s_lshl_b32 s47, s20, 13
    s_mov_b32 m0, s47
    """)
    for k in range(8):
        xc = ((2 * (k & 1)) | ((k >> 2) << 2)) * 16
        A(f'v_xor_b32 v5, {xc}, v4')
        A(f'buffer_load_dwordx4 v5, s[32:35], s46 offen lds')
        if k < 7: A(f's_add_u32 s46, s46, 16384\ns_add_u32 m0, m0, 1024')
    A(f"""
    s_mul_i32 s48, s42, 28
    s_lshl_b32 s49, s41, 2
    s_add_u32 s48, s48, s49
    s_mul_i32 s48, s48, 14336
    s_add_u32 s48, s48, {WA}
    s_mov_b32 s49, 14336
    s_mov_b32 s50, {fbits(256 ** -0.5 * math.log2(math.e))}
    s_branch Lp_rows
    Lp_colB:
    v_lshrrev_b32 v2, 3, v1
    v_mul_u32_u24 v2, 896, v2
    v_and_b32 v4, 7, v1
    v_bfe_u32 v5, v1, 4, 1
    v_lshlrev_b32 v5, 1, v5
    v_xor_b32 v4, v4, v5
    v_xor_b32 v5, 4, v4
    v_lshl_add_u32 v4, v4, 4, v2
    v_lshl_add_u32 v5, v5, 4, v2
    s_mul_i32 s46, s42, 229376
    s_mul_i32 s47, s20, {64*896}
    s_add_u32 s46, s46, s47
    s_lshl_b32 s47, s41, 7
    s_add_u32 s46, s46, s47
    s_lshl_b32 s47, s20, 13
    s_mov_b32 m0, s47
    """)
    for k in range(8):
        A(f'buffer_load_dwordx4 v{4 + (k & 1)}, s[32:35], s46 offen lds')
        if k < 7: A(f's_add_u32 s46, s46, {8*896}\ns_add_u32 m0, m0, 1024')
    A(f"""
    s_lshl_b32 s48, s41, 6
    s_add_u32 s48, s48, s42
    s_mul_i32 s48, s48, 14336
    s_add_u32 s48, s48, {WB}
    s_mov_b32 s49, {16*14336}
    s_mov_b32 s50, 1.0
    Lp_rows:
    s_lshl_b32 s51, s20, 18
    s_add_u32 s51, s51, s44         ; w*32*8192 + h*512
    s_lshl_b32 s52, s20, 15
    s_add_u32 s52, s52, 32768
    s_lshl_b32 s53, s20, 10
    s_add_u32 s48, s48, s53         ; + t*1024
    """)
    def panel(slot):
        A(f's_add_u32 m0, s52, {slot*16384}\ns_mov_b32 s46, s51')
        for i in range(16):
            xc = ((2 * (i & 1)) | ((i >> 2) << 2)) * 16
            A(f'v_xor_b32 v5, {xc}, v3')
            A(f'buffer_load_dwordx4 v5, s[28:31], s46 offen lds')
            if i < 15: A(f's_add_u32 s46, s46, 16384\ns_add_u32 m0, m0, 1024')
        A(f's_add_u32 s51, s51, {4*32*8192}')
    panel(0); panel(1)
    clears()
    A("""
    v_and_b32 v2, 15, v1
    v_lshrrev_b32 v4, 4, v1
    v_xor_b32 v5, v2, v4
    v_lshlrev_b32 v5, 4, v5
    v_lshrrev_b32 v7, 2, v2
    v_lshlrev_b32 v7, 3, v7
    v_and_b32 v2, 3, v2
    v_add_u32 v7, v7, v2
    v_lshl_add_u32 v12, v7, 9, v5
    v_xor_b32 v13, 64, v12
    v_xor_b32 v14, 128, v12
    v_xor_b32 v15, 192, v12
    v_lshlrev_b32 v6, 4, v1
    """)
    A(f"""
    s_waitcnt vmcnt({32 + CLR_PER_THREAD})
    s_barrier
    s_cmp_eq_u32 s43, 0
    s_cbranch_scc0 Lp_rdB
    """)
    C = lambda tl, es: 64 + (tl * 8 + es) * 4
    for es in range(8):
        for tl in range(4):
            A(f'ds_read_b128 {v(C(tl,es),4)}, v{12 + (es & 3)} offset:{(tl>>1)*16384 + (tl&1)*2048 + (es>>2)*256}')
    A("""
    s_branch Lp_go
    Lp_rdB:
    v_lshrrev_b32 v4, 4, v1
    v_bfe_u32 v5, v1, 2, 2
    v_lshl_add_u32 v7, v4, 3, v5
    v_lshlrev_b32 v7, 7, v7
    v_and_b32 v2, 3, v1
    v_lshl_add_u32 v7, v2, 3, v7
    v_and_b32 v4, 1, v4
    v_lshrrev_b32 v5, 1, v5
    v_lshl_add_u32 v4, v4, 1, v5
    v_lshl_add_u32 v16, v4, 5, v7
    v_xor_b32 v17, 32, v16
    v_xor_b32 v18, 64, v16
    v_xor_b32 v19, 96, v16
    """)
    for es in range(8):
        for tl in range(4):
            for z in range(2):
                A(f'ds_read_b64_tr_b16 {v(C(tl,es)+2*z,2)}, v{16+tl} offset:{es*4096 + z*512}')
    A("""
    Lp_go:
    s_waitcnt lgkmcnt(0)
    v_add_u32 v12, s52, v12
    v_add_u32 v13, s52, v13
    v_add_u32 v14, s52, v14
    v_add_u32 v15, s52, v15
    """)
    acc = lambda z, tl: 32 + (z * 4 + tl) * 4
    waits = [16 + CLR_PER_THREAD, CLR_PER_THREAD + 20, 24, 8]
    for ch in range(4):
        slot = ch & 1
        if ch == 3:
            A('s_cmp_ge_u32 s20, 2\ns_cbranch_scc1 Lp_end')
        A(f's_waitcnt vmcnt({waits[ch]})')
        F = lambda es, z: 192 + (es * 2 + z) * 4
        for es in range(8):
            for z in range(2):
                A(f'ds_read_b128 {v(F(es,z),4)}, v{12 + (es & 3)} offset:{slot*16384 + z*2048 + (es>>2)*256}')
        for es in range(8):
            for z in range(2):
                for tl in range(4):
                    c = '0' if es == 0 else v(acc(z, tl), 4)
                    A(f'v_mfma_f32_16x16x32_bf16 {v(acc(z,tl),4)}, {v(F(es,z),4)}, {v(C(tl,es),4)}, {c}')
        if ch < 2: panel(slot)
        A('s_mov_b32 s54, s48')
        for tl in range(4):
            for z in range(2):
                for r in range(4): A(f'v_mul_f32 v{acc(z,tl)+r}, s50, v{acc(z,tl)+r}')
            o = 20 + (tl & 1) * 4
            for z in range(2):
                for p in range(2):
                    A(f'v_cvt_pk_bf16_f32 v{o+2*z+p}, v{acc(z,tl)+2*p}, v{acc(z,tl)+2*p+1}')
            A(f'buffer_store_dwordx4 {v(o,4)}, v6, s[24:27], s54 offen')
            if tl < 3: A('s_add_u32 s54, s54, s49')
        A('s_add_u32 s48, s48, 4096')
    A('s_branch Lp_end')
    A('Lp_misc:')
    srd(A, 28, 4, XBYTES)
    srd(A, 32, 6, 7168)
    A(f"""
    s_sub_u32 s40, s22, 28
    s_lshl_b32 s40, s40, 3
    s_add_u32 s40, s40, s21         ; idx 0..31
    s_lshl_b32 s41, s40, 2
    s_add_u32 s41, s41, s20
    s_mul_i32 s41, s41, {16*896}
    v_lshrrev_b32 v2, 3, v1
    v_mul_u32_u24 v2, 896, v2
    v_and_b32 v3, 7, v1
    v_lshl_add_u32 v3, v3, 4, v2
    s_add_u32 s42, s41, {8*896}
    """)
    for grp in range(2):
        for tp in range(7):
            A(f'buffer_load_dwordx4 {v(16 + grp*28 + tp*4, 4)}, v3, s[28:31], s{41+grp} offen offset:{tp*128}')
    clears()
    A(f's_mov_b32 s43, 0xffff0000\ns_mov_b32 s44, {fbits(1/448)}\ns_mov_b32 s45, {fbits(1e-5)}')
    for grp in range(2):
        src = 16 + grp * 28; X = 80
        for d in range(28):
            A(f'v_lshlrev_b32 v{X+2*d}, 16, v{src+d}\nv_and_b32 v{X+2*d+1}, s43, v{src+d}')
        A(f'v_pk_add_f32 v[4:5], {v(X,2)}, {v(X+2,2)}')
        for d in range(2, 28): A(f'v_pk_add_f32 v[4:5], v[4:5], {v(X+2*d,2)}')
        A('v_add_f32 v4, v4, v5')
        red8(A, 'v_add_f32', 4, 5)
        A('v_mul_f32 v4, s44, v4')
        for d in range(28): A(f'v_pk_add_f32 {v(X+2*d,2)}, {v(X+2*d,2)}, v[4:5] op_sel_hi:[1,0] neg_lo:[0,1] neg_hi:[0,1]')
        A(f'v_pk_mul_f32 v[12:13], {v(X,2)}, {v(X,2)}')
        for d in range(1, 28): A(f'v_pk_fma_f32 v[12:13], {v(X+2*d,2)}, {v(X+2*d,2)}, v[12:13]')
        A('v_add_f32 v12, v12, v13')
        red8(A, 'v_add_f32', 12, 13)
        A('v_mov_b32 v13, s45\nv_fmac_f32 v13, s44, v12\nv_rsq_f32 v12, v13')
        for d in range(28):
            A(f'v_pk_mul_f32 {v(X+2*d,2)}, {v(X+2*d,2)}, v[12:13] op_sel_hi:[1,0]')
            A(f'v_cvt_pk_bf16_f32 v{src+d}, v{X+2*d}, v{X+2*d+1}')
            A(f'v_min_u32 v{src+d}, -2, v{src+d}')
        A(f's_add_u32 s46, s{41+grp}, {XS0}')
        for tp in range(7):
            A(f'buffer_store_dwordx4 {v(src + tp*4, 4)}, v3, s[24:27], s46 offen offset:{tp*128}')
    A(f"""
    s_cmp_lg_u32 s40, 0
    s_cbranch_scc1 Lp_home
    v_bfe_u32 v2, v1, 2, 3
    v_mul_u32_u24 v2, 224, v2
    v_and_b32 v4, 3, v1
    v_lshl_add_u32 v2, v4, 1, v2
    v_lshrrev_b32 v4, 5, v1
    v_add_u32 v2, v2, v4
    v_lshlrev_b32 v2, 2, v2
    s_lshl_b32 s41, s20, 5
    v_lshlrev_b32 v4, 2, v0
    s_mov_b32 s42, 4096
    s_mov_b32 s43, 8192
    s_mov_b32 s44, 12288
    """)
    for k in range(7):
        A(f'buffer_load_dword v{16+k}, v2, s[32:35], s41 offen offset:{k*128}')
    for k in range(7):
        A(f'v_min_u32 v{16+k}, -2, v{16+k}')
        so = ('0', 's42')[k >> 2]; so2 = ('s43', 's44')[k >> 2]
        A(f'buffer_store_dword v{16+k}, v4, s[24:27], {so} offen offset:{(k&3)*1024}')
        A(f'buffer_store_dword v{16+k}, v4, s[24:27], {so2} offen offset:{(k&3)*1024}')
    A(f"""
    Lp_home:
    s_and_b32 s41, s20, 1
    s_lshl_b32 s41, s41, 13
    s_lshr_b32 s42, s20, 1
    s_lshl_b32 s42, s42, 9
    s_add_u32 s41, s41, s42
    s_add_u32 s41, s41, 7168
    s_lshl_b32 s42, s40, 14
    s_add_u32 s41, s41, s42
    s_mov_b32 s42, -1
    v_lshlrev_b32 v2, 2, v1
    s_waitcnt vmcnt(0)
    """)
    for k in range(3):
        A("""
        s_memtime s[44:45]
        s_waitcnt lgkmcnt(0)
        buffer_store_dword v2, v2, s[24:27], s41 offen sc1
        s_waitcnt vmcnt(0)
        s_memtime s[46:47]
        s_waitcnt lgkmcnt(0)
        s_sub_u32 s43, s46, s44
        s_min_u32 s42, s42, s43
        """)
    A(f"""
    s_lshl_b32 s43, s20, 2
    v_mov_b32 v4, s43
    v_mov_b32 v5, s42
    ds_write_b32 v4, v5
    v_mov_b32 v4, 0
    s_waitcnt lgkmcnt(0)
    s_barrier
    ds_read_b128 v[8:11], v4
    s_getreg_b32 s43, hwreg(HW_REG_XCC_ID)
    s_and_b32 s43, s43, 4
    s_lshl_b32 s43, s43, 11
    v_mov_b32 v12, 0x2000
    s_lshl_b32 s44, s40, 2
    s_add_u32 s44, s44, {PAR}
    v_min_u32 v8, v8, v10
    v_min_u32 v9, v9, v11
    v_cmp_lt_u32 vcc, v9, v8
    v_cndmask_b32 v12, 0, v12, vcc
    v_xor_b32 v12, s43, v12
    """)
    if 'nopar' not in opts: A('buffer_store_dword v12, v4, s[24:27], s44 offen')
    A('Lp_end:\ns_endpgm')
```

```python
from asmlib import *
from layout import *
from common import *
from pro import srd, fbits
import pro

L_XS, L_MEM, L_RED1, L_RED2, L_RS = 0, 0, 8192, 12288, 20480
XS_A, XS_FLIP, PARK_A = 32768, 98304, 98304
RS_STRIDE = 1056
OOB = 0x40000000
(LANE16, XSG, XSW, XSR0, XSR1, IDX, MEM1, MEM2, PARK, RED1R, RED2W, RED2R, LANE4, RES, RESV, TMP,
 NATA, SW, SR) = range(1, 20)
SEL = 20
SO, ALA, STA, M01, STAT = 24, 25, 27, 28, 30
VV = lambda hh: 32 + 4 * hh
FR, ZACC, B3, B4 = 80, 64, 116, 88
sW, sXCC, sRANK, sLAYER, sTEAM, sH, sU, sJ, sSEG, sN, sTB, sBIG = range(20, 32)
sXS, sMEMR, sMEMW, sXA = 32, 33, 34, 35
sSW, sSC, sSR0, sSR1, sER, sSTR, sEW, sEC = 36, 37, 38, 39, 40, 41, 42, 43
sRES, sKX, sKM, sFL, sPW, sPC, sP01, sP23, sPM, sKM2 = 48, 49, 50, 51, 52, 53, 54, 55, 56, 57
sT0, sT1 = 58, 59
sMASK = lambda r: 60 + 2 * r
sLO8 = 68
sB = 71
sAM = lambda d: 92 + 2 * d
sPMW, sPMC = 16, 17
sLO32 = 100
sT2 = 18
sXD, sXX, sXL = 60, 61, 62
MF = 'v_mfma_f32_16x16x32_bf16'
SM = 'v_smfmac_f32_16x16x64_bf16'
DPP = 'row_mask:0xf bank_mask:0xf'

class AW:
    X = False
    @staticmethod
    def wa(tl, t, n=4): return a(tl * 56 + t * 4, n)
    @staticmethod
    def wb(hh, t, n=4):
        q = hh * 56 + t * 4
        return a(224 + q, n) if q < 32 else v(120 + q - 32, n)
class XW:
    X = True
    @staticmethod
    def wb(hh, t, n=4): return a(hh * 56 + t * 4, n)

def xs_read(A, dst, t, mt):
    A(f'ds_read_b128 {v(dst,4)}, v{XSR1 if t & 1 else XSR0} offset:{L_XS + (t>>1)*4096 + mt*2048}')

def cvt(A, d, src):
    A(f'v_cvt_pk_bf16_f32 v{d}, v{src}, v{src+1}\nv_cvt_pk_bf16_f32 v{d+1}, v{src+2}, v{src+3}')

def job_offsets(A, R):
    A(f"""
    s_mul_i32 s{sT0}, s{sSEG}, 28672
    s_mov_b32 s{sXS}, {XS1}
    s_cmp_eq_u32 s{sLAYER}, 0
    s_cselect_b32 s{sXS}, {XS0}, s{sXS}
    s_add_u32 s{sXS}, s{sXS}, s{sT0}
    """)
def kx_offset(R):
    o = f"""s_and_b32 s{sT0}, s{sN}, 1
    s_mul_i32 s{sKX}, s{sT0}, {16*28672}
    s_mul_i32 s{sT1}, s{sH}, 28672
    s_add_u32 s{sKX}, s{sKX}, s{sT1}
    s_add_u32 s{sKX}, s{sKX}, s{sBIG}""".split('\n')
    if not R.X: o += [f's_lshl_b32 s{sT1}, s{sB}, 12', f's_add_u32 s{sKX}, s{sKX}, s{sT1}']
    return o
def job_offsets2(R):
    o = []
    A = lambda t: o.extend(x.strip() for x in t.split('\n') if x.strip())
    A(f"""
    s_mul_i32 s{sT0}, s{sSEG}, 28672
    s_lshl_b32 s{sT1}, s{sJ}, 5
    s_add_u32 s{sRES}, s{sT0}, s{sT1}
    s_mul_i32 s{sXA}, s{sLAYER}, {XBYTES}
    s_add_u32 s{sXA}, s{sXA}, s{sT0}
    s_lshl_b32 s{sT1}, s{sJ}, 10
    s_add_u32 s{sXA}, s{sXA}, s{sT1}
    s_lshl_b32 s{sT1}, s{sW}, 8
    s_add_u32 s{sXA}, s{sXA}, s{sT1}
    s_add_u32 s{sXA}, s{sXA}, {XA}
    s_lshl_b32 s{sMEMR}, s{sSEG}, 14
    s_add_u32 s{sMEMR}, s{sMEMR}, s3
    s_lshl_b32 s{sT1}, s{sJ}, 8
    s_add_u32 s{sMEMW}, s{sMEMR}, s{sT1}
    s_add_u32 s{sMEMW}, s{sMEMW}, 16384
    s_and_b32 s{sT0}, s{sN}, 1
    s_mul_i32 s{sKM}, s{sT0}, {KM_SLOT}
    s_mul_i32 s{sT1}, s{sH}, 7168
    s_add_u32 s{sKM}, s{sKM}, s{sT1}
    s_add_u32 s{sKM}, s{sKM}, s{sTB}
    s_lshl_b32 s{sT2}, s{sT0}, 15
    s_add_u32 s{sT2}, s{sT2}, s{sBIG}
    s_add_u32 s{sT2}, s{sT2}, {B_EX}
    s_lshl_b32 s{sT1}, s{sW}, 13
    s_add_u32 s{sP01}, s{sT2}, s{sT1}
    s_add_u32 s{sP23}, s{sP01}, 4096
    s_mul_i32 s{sT0}, s{sT0}, {P_SLOT}
    s_add_u32 s{sT0}, s{sT0}, s{sTB}
    s_add_u32 s{sT0}, s{sT0}, {T_P}
    s_lshl_b32 s{sT1}, s{sW}, 12
    s_add_u32 s{sPM}, s{sT0}, s{sT1}
    """)
    if R.X:
        A(f"""
        s_lshl_b32 s{sT1}, s{sH}, 11
        s_add_u32 s{sPW}, s{sT2}, s{sT1}
        s_mov_b32 s{sPMW}, s{sT0}
        s_mov_b32 s{sT1}, {P_SLOT}
        s_bitcmp1_b32 s{sN}, 0
        s_cselect_b32 s{sT1}, {(1<<32) - P_SLOT}, s{sT1}
        s_add_u32 s{sPMC}, s{sPMW}, s{sT1}
        s_add_u32 s{sKM2}, s{sKM}, 4096
        """)
    else:
        A(f"""
        s_lshl_b32 s{sT1}, s{sB}, 10
        s_add_u32 s{sKM}, s{sKM}, s{sT1}
        """)
    A(f"""
    s_and_b32 s{sT0}, s{sN}, 3
    s_mul_i32 s{sT0}, s{sT0}, {SE_SLOT}
    s_add_u32 s{sT0}, s{sT0}, s{sTB}
    s_add_u32 s{sT0}, s{sT0}, {T_SE}
    s_add_u32 s{sT2}, s{sN}, 3
    s_and_b32 s{sT2}, s{sT2}, 3
    s_mul_i32 s{sT2}, s{sT2}, {SE_SLOT}
    s_add_u32 s{sT2}, s{sT2}, s{sTB}
    s_add_u32 s{sT2}, s{sT2}, {T_SE}
    s_lshl_b32 s{sT1}, s{sU}, 4
    s_add_u32 s{sT1}, s{sT1}, s{sH}
    s_lshl_b32 s{sT1}, s{sT1}, 8
    s_add_u32 s{sSW}, s{sT0}, s{sT1}
    s_add_u32 s{sSC}, s{sT2}, s{sT1}
    s_lshl_b32 s{sT1}, s{sW}, 10
    s_add_u32 s{sSR0}, s{sT0}, s{sT1}
    s_add_u32 s{sSR1}, s{sSR0}, 4096
    s_lshl_b32 s{sT1}, s{sW}, 11
    s_add_u32 s{sER}, s{sT0}, s{sT1}
    s_add_u32 s{sER}, s{sER}, 8192
    s_add_u32 s{sSTR}, s{sT0}, 16384
    """)
    if R.X:
        A(f's_mov_b32 s{sEW}, s{sT0}\ns_mov_b32 s{sEC}, s{sT2}')
    return o

XLD = lambda tp: f'buffer_load_dwordx4 {v(80+4*tp,4)}, v{XSG}, s[8:11], s{sXS} offen offset:{tp*128} sc1'
XWR = [f'ds_write_b128 v{XSW}, {v(80+4*tp,4)} offset:{tp*4096}' for tp in range(7)]
XLD2 = [f'buffer_load_dwordx4 {v(48+4*k,4)}, v{XSG}, s[8:11], s{sT2} offen offset:{k*256} sc1' for k in range(3)]
XWR2 = [f'ds_write_b128 v0, {v(48+4*k,4)} offset:{k*8192}' for k in range(3)]
def xs_load(A, both=True, pre=()):
    D = A.newlabel('xsok'); RT = A.newlabel('xsretry'); U = A.newlabel('xsu'); RU = A.newlabel('xsretryu')
    for t in pre: A(t)
    for tp in range(7): A(XLD(tp))
    if both: A(f's_cmp_eq_u32 s{sU}, 1\ns_cbranch_scc1 {U}')
    for t in XWR: A(t)
    check(A, regs(80, 28), TMP)
    A(f's_cbranch_vccnz {RT}\n{D}:')
    barrier(A)
    def retry():
        A(f'{RT}:')
        poll(A, [XLD(6)], regs(104, 4), TMP)
        poll(A, [XLD(tp) for tp in range(6)], regs(80, 24), TMP)
        for t in XWR: A(t)
        A(f's_branch {D}')
        if not both: return
        A(f'{U}:\ns_add_u32 s{sT2}, s{sXS}, s{sXD}')
        for t in XLD2: A(t)
        A(f'v_xor_b32 v0, s{sXX}, v{XSW}\nv_add_u32 v0, s{sXL}, v0')
        for t in XWR + XWR2: A(t)
        check(A, regs(80, 28) + regs(48, 12), TMP)
        A(f's_cbranch_vccz {D}')
        poll(A, [XLD(6)], regs(104, 4), TMP)
        poll(A, [XLD(tp) for tp in range(6)] + XLD2, regs(80, 24) + regs(48, 12), TMP)
        for t in XWR + XWR2: A(t)
        A(f's_branch {D}')
    return retry
def next_seg(A, last):
    A(f"""
    s_add_u32 s{sSEG}, s{sSEG}, 3
    s_add_u32 s{sXS}, s{sXS}, {3*28672}
    v_xor_b32 v{XSW}, {XS_FLIP}, v{XSW}
    s_cmp_ge_u32 s{sSEG}, {NSEG}
    s_cbranch_scc1 {last}
    """)
def flip_read(A):
    A(f'v_xor_b32 v{XSR0}, {XS_FLIP}, v{XSR0}\nv_xor_b32 v{XSR1}, {XS_FLIP}, v{XSR1}\ns_add_u32 s{sN}, s{sN}, 1')

class GSeq:
    def __init__(self, A, R, passes):
        self.A, self.R, self.passes = A, R, passes
    def rd(self, i):
        if i >= 14 * len(self.passes): return []
        kind, mt, ab = self.passes[i // 14]; t = i % 14
        o = [f'ds_read_b128 {v(80+(i%3)*4,4)}, v{XSR1 if t & 1 else XSR0} offset:{L_XS + (t>>1)*4096 + mt*2048}']
        if kind == 2 and not self.R.X: o.append(f'ds_read_b128 {v(92+(i%3)*4,4)}, v{PARK} offset:{t*1024}')
        return o
    def start(self):
        for t in self.rd(0) + self.rd(1): self.A(t)
    def ops(self, p):
        kind, mt, ab = self.passes[p]; R = self.R; o = []
        for t in range(14):
            i = p * 14 + t; f = v(80 + (i % 3) * 4, 4)
            for q in range(4):
                D = v(ab + q * 4, 4); c = '0' if t == 0 else D
                if kind == 1: m = f'{MF} {D}, {R.wa(q,t)}, {f}, {c}'
                else:
                    w = v(92 + (i % 3) * 4, 4) if (q == 3 and not R.X) else R.wb(q, t)
                    m = f'{MF} {D}, {f}, {w}, {c}'
                r = self.rd(i + 2)
                o.append([m] + r[q:q+1] if q < 2 else [m])
        return o

def kx_out(mt, ab, ob):
    o = []
    for zz in range(2):
        d = ob + zz * 4
        for k in range(4): o.append(f'v_cvt_pk_bf16_f32 v{d+k}, v{ab+zz*8+2*k}, v{ab+1+zz*8+2*k}')
        o.append(f'buffer_store_dwordx4 {v(d,4)}, v{LANE16}, s[8:11], s{sKX} offen offset:{(zz*2+mt)*1024}')
    return o
def v_out(A, a0, a1):
    for hh in range(4):
        for r in range(4): A(f'v_cvt_pk_bf16_f32 v{VV(hh)+r}, v{a0+hh*4+r}, v{a1+hh*4+r}')

def kx_flag(A, kt):
    A(f"""
    s_lshl_b32 s{sT0}, s{sN}, 1
    s_or_b32 s{sT0}, s{sT0}, {kt}
    s_waitcnt vmcnt(0)
    v_mov_b32 v{TMP}, s{sT0}
    s_mov_b64 exec, 1
    buffer_store_dword v{TMP}, off, s[8:11], s{sFL}
    s_mov_b64 exec, -1
    """)

def get_mem(A, R, zr, st):
    sets = (108, 100)
    ld = lambda m: A(f'buffer_load_dwordx4 {v(m,4)}, v{MEM1}, s[8:11], s{sMEMR} offen sc1\nbuffer_load_dwordx4 {v(m+4,4)}, v{MEM2}, s[8:11], s{sMEMR} offen sc1')
    L = A.newlabel('mpoll'); D = A.newlabel('mgot')
    ld(sets[0])
    for r in zr: A(f'v_mov_b32 v{r}, 0')
    A(f's_mov_b32 s{SCNT}, 0\n{L}:')
    for k in range(2):
        m = sets[k]
        ld(sets[1 - k])
        if k == 0: A(f's_add_u32 s{SCNT}, s{SCNT}, 1\ns_cmp_gt_u32 s{SCNT}, {TIMEOUT}\ns_cbranch_scc1 Lfail')
        for _ in range(OPT['mwarm']): A(f'v_mov_b32 v{TMP}, 0\ns_nop 3')
        A(f's_waitcnt vmcnt(3)\nds_write_b128 v{MEM1}, {v(m,4)} offset:{L_MEM}\ns_waitcnt vmcnt(2)\nds_write_b128 v{MEM2}, {v(m+4,4)} offset:{L_MEM}')
        check(A, regs(m, 8), TMP)
        A(f's_cbranch_vccz {D}' if k == 0 else f's_cbranch_vccnz {L}')
    A(f'{D}:')
    st('mgot')
    barrier(A)
    st('b2')
    for b in range(7):
        if b == 5: A('s_waitcnt vmcnt(0)')
        A(f'ds_read_b128 {v(FR+4*b,4)}, v{LANE16} offset:{L_MEM + b*1024}')

def zero(A, base, n):
    for r in range(base, base + n): A(f'v_mov_b32 v{r}, 0')

def km(A, R, fill):
    acc = lambda tl: 48 + 4 * tl
    C = lambda tt: 108 + 4 * tt
    def tile(tl, hooks={}):
        for b in range(7):
            A(f'{SM} {v(acc(tl),4)}, {v(FR+4*b,4)}, {R.wa(tl,2*b,8)}, v{IDX}')
            if b in hooks: hooks[b]()
    c1 = lambda d, s_: A(f'v_cvt_pk_bf16_f32 v{d}, v{s_}, v{s_+1}')
    tile(0)
    tile(2, {2: lambda: c1(C(0), acc(0)), 3: lambda: c1(C(0) + 1, acc(0) + 2)})
    tile(1, {1: lambda: c1(C(0) + 2, acc(2)), 2: lambda: c1(C(0) + 3, acc(2) + 2),
             4: lambda: A(f'{MF} {v(acc(0),4)}, {v(C(0),4)}, {v(SEL,4)}, 0'),
             5: lambda: A(f'ds_read2_b32 v[108:109], v{NATA} offset0:0 offset1:32'),
             6: lambda: A(f'ds_read2_b32 v[110:111], v{NATA} offset0:1 offset1:33')})
    tile(3, {0: lambda: c1(116, acc(0)), 1: lambda: c1(117, acc(0) + 2), 2: lambda: c1(C(1), acc(1)), 3: lambda: c1(C(1) + 1, acc(1) + 2),
             4: lambda: A('s_waitcnt lgkmcnt(0)')})
    fill(OPT['kf'])
    cvt(A, C(1) + 2, acc(3))
    A(f'{MF} {v(acc(1),4)}, {v(C(1),4)}, {v(SEL,4)}, 0')
    fill(OPT['kf'])
    cvt(A, 118, acc(1))
    A(f'{MF} {v(acc(2),4)}, v[116:119], v[108:111], 0')
    A(f'buffer_store_dwordx4 v[116:119], v{LANE16}, s[8:11], s{sKM} offen')
    fill(OPT['kf'])
    A(f'ds_write_b128 v{SW}, {v(acc(2),4)}')

def zop(R, hh, b):
    w = v(48 + (b & 1) * 8, 8) if (hh == 3 and not R.X) else R.wb(hh, 2 * b, 8)
    return f'{SM} {v(ZACC+4*hh,4)}, {v(FR+4*b,4)}, {w}, v{IDX}'
def prd(b):
    p = 48 + (b & 1) * 8
    return [f'ds_read_b128 {v(p,4)}, v{PARK} offset:{2*b*1024}', f'ds_read_b128 {v(p+4,4)}, v{PARK} offset:{(2*b+1)*1024}']

def s_reduce(A, fill, st, after_read=()):
    st('sw')
    fill(OPT['wf'])
    barrier(A)
    st('bs')
    T = STAT
    A(f'ds_read2_b32 {v(T,2)}, v{SR} offset0:0 offset1:160')
    ar = list(after_read)
    for _ in range(OPT['rf']):
        fill(1); take(A, ar, 1)
    A(f'v_add_f32 v{T}, v{T}, v{T+1}')
    take(A, ar, 2)
    if OPT['df']: fill(1)
    A(f'v_add_f32_dpp v{T}, v{T}, v{T} quad_perm:[1,0,3,2] {DPP}')
    take(A, ar, 2)
    if OPT['df']: fill(1)
    A(f'v_add_f32_dpp v{T}, v{T}, v{T} quad_perm:[2,3,0,1] {DPP}')
    A(f'buffer_store_dword v{T}, v{SO}, s[8:11], s{sSW} offen')
    take(A, ar, 9)

E_LOADS = [f'buffer_load_dwordx4 {v(108+4*pp,4)}, v{LANE16}, s[8:11], s{sER} offen offset:{pp*1024} sc1' for pp in range(2)] + \
          [f'buffer_load_dword v{STAT+k}, v{STA}, s[8:11], s{sSTR} offen offset:{4*k} sc1' for k in range(2)]
SSET = (80, 72)
S_LOADS = [[f'buffer_load_dwordx4 {v(m,4)}, v{LANE16}, s[8:11], s{sSR0} offen sc1',
            f'buffer_load_dwordx4 {v(m+4,4)}, v{LANE16}, s[8:11], s{sSR1} offen sc1'] for m in SSET]
def zmix(h):
    Z = lambda x: ZACC + 4 * x
    o = [f'v_permlane32_swap_b32 v{Z(h)+r}, v{Z(h+2)+r}' for r in range(4)]
    o += [f'v_add_f32 v{Z(h)+r}, v{Z(h)+r}, v{Z(h+2)+r}' for r in range(4)]
    o += [f'v_cvt_pk_bf16_f32 v{B3+2*h+p}, v{Z(h)+2*p}, v{Z(h)+2*p+1}' for p in range(2)]
    return o

def finish(A, R, st, pre_b3=()):
    eregs = regs(108, 8) + [STAT, STAT + 1]
    st('zend')
    check(A, eregs, TMP)
    D = A.newlabel('eok'); ER = A.newlabel('eretry')
    A(f's_cbranch_vccnz {ER}\n{D}:')
    st('egot')
    yop = [f'{MF} {v(48+4*hq,4)}, {v(108+4*(hq&1),4)}, {v(VV(hq),4)}, 0' for hq in range(4)]
    zm = zmix(1)
    weave(A, yop, zm, 1)
    take(A, zm, 99)
    for t in S_LOADS[1]: A(t)
    for hq in range(2): cvt(A, B4 + 2 * hq, 48 + 4 * hq)
    A(f'v_permlane16_swap_b32 v{B3}, v{B3+2}\nv_permlane16_swap_b32 v{B3+1}, v{B3+3}')
    for hq in range(2, 4): cvt(A, 92 + 2 * (hq - 2), 48 + 4 * hq)
    for k in (0, 2, 1, 3): A(f'v_cndmask_b32 v{B4+k}, v{92+k}, v{B4+k}, s[{sLO32}:{sLO32+1}]')
    L = A.newlabel('sred'); K = A.newlabel('sok'); RT = A.newlabel('sretry')
    A(f'v_permlane16_swap_b32 v{B4}, v{B4+2}\ns_mov_b32 s{SCNT}, 0\nv_permlane16_swap_b32 v{B4+1}, v{B4+3}')
    st('rdy')
    def head(m):
        A(f"""
        s_waitcnt vmcnt(2)
        v_pk_add_f32 v[96:97], {v(m,2)}, {v(m+4,2)}
        v_pk_add_f32 v[98:99], {v(m+2,2)}, {v(m+6,2)}
        v_max3_f32 v100, v96, v97, v98
        v_max3_f32 v100, v100, v99, v{STAT}
        v_pk_add_f32 v[104:105], v[96:97], v[98:99]
        v_cmp_u_f32 vcc, v104, v105
        """)
    A(f'{L}:')
    head(SSET[0])
    A(f's_cbranch_vccnz {RT}\n{K}:')
    st('sgot')
    A(f"""
    v_max_f32_dpp v100, v100, v100 row_ror:8 {DPP}
    v_sub_f32 v102, v{STAT}, v100
    v_pk_add_f32 v[96:97], v[96:97], v[100:101] op_sel_hi:[1,0] neg_lo:[0,1] neg_hi:[0,1]
    v_pk_add_f32 v[98:99], v[98:99], v[100:101] op_sel_hi:[1,0] neg_lo:[0,1] neg_hi:[0,1]
    v_exp_f32 v96, v96
    v_exp_f32 v97, v97
    v_exp_f32 v98, v98
    v_exp_f32 v99, v99
    v_exp_f32 v102, v102
    v_pk_add_f32 v[104:105], v[96:97], v[98:99]
    v_add_f32 v104, v104, v105
    v_fmac_f32 v104, v102, v{STAT+1}
    v_pk_mul_f32 v[102:103], v[102:103], {v(M01,2)} op_sel_hi:[0,1]
    v_add_f32_dpp v104, v104, v104 row_ror:8 {DPP}
    v_rcp_f32 v104, v104
    v_pk_mul_f32 v[96:97], v[96:97], v[104:105] op_sel_hi:[1,0]
    v_pk_mul_f32 v[98:99], v[98:99], v[104:105] op_sel_hi:[1,0]
    v_pk_mul_f32 v[102:103], v[102:103], v[104:105] op_sel_hi:[1,0]
    v_cvt_pk_bf16_f32 v48, v96, v97
    v_cvt_pk_bf16_f32 v49, v98, v99
    v_cvt_pk_bf16_f32 v102, v102, v103
    v_mov_b32_dpp v50, v48 row_ror:8 {DPP}
    v_mov_b32_dpp v51, v49 row_ror:8 {DPP}
    v_cndmask_b32 v92, 0, v102, s[{sAM(0)}:{sAM(0)+1}]
    v_cndmask_b32 v93, 0, v102, s[{sAM(1)}:{sAM(1)+1}]
    {MF} v[60:63], {v(B3,4)}, v[48:51], 0
    v_cndmask_b32 v94, 0, v102, s[{sAM(2)}:{sAM(2)+1}]
    v_cndmask_b32 v95, 0, v102, s[{sAM(3)}:{sAM(3)+1}]
    {MF} v[60:63], {v(B4,4)}, v[92:95], v[60:63]
    ds_write_b128 v{MEM1}, v[60:63] offset:{L_RED1}
    """)
    st('fw')
    for t in pre_b3: A(t)
    if not R.X: A(f's_cmp_lg_u32 s{sW}, 0')
    barrier(A)
    st('b3')
    if not R.X:
        N = A.newlabel('nored')
        A(f's_cbranch_scc1 {N}')
        for w in range(4): A(f'ds_read_b64 {v(52+2*w,2)}, v{RED1R} offset:{w*1024}')
        A(f"""
        v_pk_add_f32 v[52:53], v[52:53], v[54:55]
        v_pk_add_f32 v[52:53], v[52:53], v[56:57]
        v_pk_add_f32 v[52:53], v[52:53], v[58:59]
        v_cvt_pk_bf16_f32 v52, v52, v53
        buffer_store_dword v52, v{LANE4}, s[8:11], s{sMEMW} offen sc1
        {N}:
        """)
    def retry():
        A(f'{ER}:')
        poll(A, E_LOADS, eregs, TMP)
        for t in S_LOADS[0]: A(t)
        A(f's_branch {D}')
        A(f'{RT}:')
        for k in range(2):
            check(A, regs(SSET[k], 8), TMP)
            A(f's_cbranch_vccz {K}')
            for t in S_LOADS[k]: A(t)
            for _ in range(OPT['swarm']): A(f'v_mov_b32 v{TMP}, 0\ns_nop 3')
            if k == 0:
                head(SSET[1])
                A(f's_cbranch_vccz {K}')
        A(f's_add_u32 s{SCNT}, s{SCNT}, 1\ns_cmp_gt_u32 s{SCNT}, {TIMEOUT}\ns_cbranch_scc1 Lfail')
        A(f's_branch {L}')
    return retry

def s_clear(A):
    A(f'v_mov_b32 v{TMP}, -1\nbuffer_store_dword v{TMP}, v{SO}, s[8:11], s{sSC} offen')

EX_LOADS = [f'buffer_load_dwordx4 {v(48+8*hh+4*qt,4)}, v{LANE16}, s[8:11], s{sP23 if hh >> 1 else sP01} offen offset:{(hh&1)*2048+qt*1024} sc1' for hh in range(4) for qt in range(2)]
RES_LOAD = f'buffer_load_dword v{RESV}, v{RES}, s[12:15], s{sRES} offen sc1'
Y_OPS = [f'{MF} {v(48+8*hh+4*qt,4)}, {v(VV(hh),4)}, {v(48+8*hh+4*qt,4)}, 0' for hh in range(4) for qt in range(2)]
LATE = [f'buffer_load_dwordx4 {v(32+4*qt,4)}, v{ALA}, s[8:11], s{sPM} offen offset:{2048+qt*256} sc1' for qt in range(2)] + \
       [f'buffer_load_dwordx4 {v(108+4*qt,4)}, v{LANE16}, s[8:11], s{sPM} offen offset:{qt*1024} sc1' for qt in range(2)]
LREG = regs(32, 8) + regs(108, 8) + [RESV]

def tok_finish(A, st, fill):
    st('tl')
    check(A, LREG, TMP)
    D = A.newlabel('lateok'); RT = A.newlabel('lateretry')
    A(f's_cbranch_vccnz {RT}\n{D}:')
    st('tf')
    for hh in range(4):
        for qt in range(2):
            for p in range(2):
                y = v(48 + 8 * hh + 4 * qt + 2 * p, 2); d = v(48 + 4 * qt + 2 * p, 2)
                al = v(32 + 4 * qt + (hh & 2), 2); sel = f'op_sel:[0,{hh&1}{",0" if hh else ""}] op_sel_hi:[1,{hh&1}{",1" if hh else ""}]'
                if hh == 0: A(f'v_pk_mul_f32 {d}, {y}, {al} {sel}')
                else: A(f'v_pk_fma_f32 {d}, {y}, {al}, {d} {sel}')
    A(f'v_lshlrev_b32 v32, 16, v{RESV}\nv_and_b32 v33, 0xffff0000, v{RESV}')
    for qt in range(2): A(f'{MF} {v(48+4*qt,4)}, {v(B3,4)}, {v(108+4*qt,4)}, {v(48+4*qt,4)}')
    fill(1)
    A(f'ds_write_b128 v{RED2W}, v[48:51] offset:{L_RED2}')
    fill(1)
    A(f'ds_write_b128 v{RED2W}, v[52:55] offset:{L_RED2+1024}')
    fill(5)
    barrier(A)
    G = 56
    for w in range(4):
        A(f'ds_read_b64 {v(G+2*w,2)}, v{RED2R} offset:{L_RED2 + w*2048}')
    fill(4)
    for w in range(4):
        A(f'v_add_f32 v32, v32, v{G+2*w}\nv_add_f32 v33, v33, v{G+2*w+1}')
        fill(1)
    A(f"""
    v_cvt_pk_bf16_f32 v32, v32, v33
    buffer_store_dword v32, v{LANE4}, s[8:11], s{sXA} offen sc1
    """)
    st('xa')
    def retry():
        A(f'{RT}:')
        poll(A, [RES_LOAD] + LATE, LREG, TMP)
        A(f's_branch {D}')
    return retry

NF = 15
def pass0(A, R, G, st, lab):
    G.start()
    ops = G.ops(0)
    o = kx_offset(R)
    side = {}
    e = OPT['estep']
    for k in range(8): side[k * e] = [EX_LOADS[k]]
    y0 = OPT['y0']
    side[y0] = side.get(y0, []) + Y_OPS[:4]
    assert y0 <= 10 * e
    for k in range(4): side[(8 + k) * e] = side.get((8 + k) * e, []) + [LATE[(k + 2) & 3]]
    side[OPT['y1']] = side.get(OPT['y1'], []) + Y_OPS[4:]
    for i, m in enumerate(ops):
        for t in m: A(t)
        if i in side:
            for t in side[i]: A(t)
        else: take(A, o, 1)
    ops = G.ops(1)[:NF]
    def emit(k):
        for _ in range(k):
            for t in ops.pop(0): A(t)
    retry = tok_finish(A, st, emit)
    assert not ops
    A(f'{lab}_p1:')
    def first():
        A(f'{lab}_first:')
        G.start()
        o = kx_offset(R)
        weave(A, G.ops(0) + G.ops(1)[:NF], o, 2)
        A(f's_waitcnt lgkmcnt(0)\ns_nop 7\ns_branch {lab}_p1')
    def last():
        A(f'{lab}_last:')
        for t in [RES_LOAD] + EX_LOADS + Y_OPS + LATE: A(t)
        r2 = tok_finish(A, lambda n: None, lambda k: None)
        A('s_branch Ldone')
        r2()
    return [retry, first, last]

NSEG = 64
OPT = dict(mwarm=2, swarm=1, kf=1, wf=4, rf=3, df=1, spos=5, xpad=4, estep=3, y0=24, y1=40, f0=46, f1=22, bq=20)
def gen_attn(A, opts):
    global NSEG
    if 'one' in opts: NSEG = 3
    for o in opts:
        k, _, x = o.partition('=')
        if k in OPT: OPT[k] = int(x)
    st = Stamps(A, opts, 'ast')
    st.init()
    A(f"""
    s_lshr_b32 s{sH}, s{sRANK}, 1
    s_and_b32 s{sU}, s{sRANK}, 1
    s_add_u32 s{sT0}, s{sH}, 16
    s_cmp_eq_u32 s{sU}, 1
    s_cselect_b32 s{sJ}, s{sH}, s{sT0}
    s_lshl_b32 s{sB}, s{sU}, 2
    s_add_u32 s{sB}, s{sB}, s{sW}
    ; s41 = B tiles of this wave (out of range where the unit has none), s43 = their counter
    s_lshl_b32 s41, s{sJ}, 2
    s_add_u32 s41, s41, s{sW}
    s_mul_i32 s41, s41, {4*14336}
    s_add_u32 s41, s41, {WB}
    s_cmp_ge_u32 s{sJ}, 28
    s_cselect_b32 s41, {OOB}, s41
    s_lshl_b32 s42, s{sW}, 14
    s_add_u32 s42, s42, {PARK_A}
    s_lshl_b32 s43, s{sW}, 5
    s_add_u32 s43, s43, {D_CB}
    s_cmp_eq_u32 s{sB}, 7
    s_cbranch_scc1 LX_pro
    """)
    def wload(q, X=False):
        so = f's_add_u32 s40, s41, {q*1024}\n'
        if q >= 42 and not X: return so + f's_add_u32 m0, s42, {(q-42)*1024}\nbuffer_load_dwordx4 v{LANE16}, s[8:11], s40 offen sc1 lds'
        return so + f'buffer_load_dwordx4 {a(4*q,4) if X else AW.wb(q // 14, q % 14)}, v{LANE16}, s[8:11], s40 offen sc1'
    aw = lambda: pro.await_(A, ['s43'], 115)
    early = list(range(8)) + list(range(24, 36)) + list(range(42, 56))
    pro.acomp(A, False, sH, sB, [wload(q) for q in early], aw, OPT['bq'])
    A('s_branch Lpro_done\nLX_pro:')
    pro.acomp(A, True, sH, sB, [wload(q, True) for q in range(56)], aw, OPT['bq'])
    A('Lpro_done:')
    once(A, 'ac')
    A(f"""
    s_mov_b32 s{sSEG}, s{sTEAM}
    s_mov_b32 s{sN}, 0
    s_add_u32 s{sT0}, s6, {XB}
    s_addc_u32 s{sT1}, s7, 0
    s_cmp_eq_u32 s{sLAYER}, 0
    s_cselect_b32 s12, s4, s{sT0}
    s_cselect_b32 s13, s5, s{sT1}
    s_mov_b32 s14, {XBYTES}
    s_mov_b32 s15, 0x20000
    s_mov_b32 s{sLO8}, 0x00ff00ff
    s_mov_b32 s{sLO8+1}, 0x00ff00ff
    s_lshl_b32 s{sFL}, s{sH}, 7
    s_add_u32 s{sFL}, s{sFL}, s{sTB}
    s_add_u32 s{sFL}, s{sFL}, {T_FL}
    """)
    for d in range(4):
        m = (3 << (2 * d)) * 0x00010001
        A(f's_mov_b32 s{sAM(d)}, {m:#x}\ns_mov_b32 s{sAM(d)+1}, {m:#x}')
    A(f"""
    v_lshrrev_b32 v48, 3, v0
    s_lshl_b32 s{sT0}, s{sW}, 3
    v_add_u32 v48, s{sT0}, v48              ; row = 8w + r8
    v_and_b32 v49, 7, v0                    ; c
    v_mul_u32_u24 v{XSG}, 896, v48
    v_lshl_add_u32 v{XSG}, v49, 4, v{XSG}
    v_bfe_u32 v50, v48, 1, 3
    v_xor_b32 v50, v50, v49
    v_lshlrev_b32 v50, 4, v50
    v_lshl_add_u32 v{XSW}, v48, 7, v50
    v_add_u32 v{XSW}, {XS_A}, v{XSW}
    v_and_b32 v48, 15, v0                   ; n
    v_lshrrev_b32 v49, 4, v0                ; g
    v_lshrrev_b32 v50, 1, v48
    v_xor_b32 v50, v50, v49
    v_lshlrev_b32 v50, 4, v50
    v_lshl_add_u32 v{XSR0}, v48, 7, v50
    v_add_u32 v{XSR0}, {XS_A}, v{XSR0}
    v_xor_b32 v{XSR1}, 64, v{XSR0}
    v_mov_b32 v{IDX}, 0x4444
    v_mov_b32 v50, 0xeeee
    v_cndmask_b32 v{IDX}, v50, v{IDX}, s[{sLO8}:{sLO8+1}]
    s_lshl_b32 s{sT0}, s{sW}, 10
    v_add_u32 v{MEM1}, s{sT0}, v{LANE16}
    s_cmp_eq_u32 s{sW}, 3
    s_cselect_b32 s{sT1}, 0, 4096
    v_add_u32 v{MEM2}, s{sT1}, v{MEM1}
    v_add_u32 v{PARK}, s42, v{LANE16}
    v_and_b32 v50, 7, v48                   ; i
    v_lshl_add_u32 v51, v49, 3, v50
    v_lshlrev_b32 v51, 4, v51               ; (g*8+i)*16
    v_mov_b32 v54, {OOB}
    v_lshlrev_b32 v{ALA}, 4, v48
    s_mov_b32 s{sLO32}, -1
    s_mov_b32 s{sLO32+1}, 0
    v_lshrrev_b32 v51, 1, v51
    s_lshl_b32 s{sT0}, s{sW}, 8
    v_add_u32 v{STA}, s{sT0}, v51           ; (4w+g)*64 + i*8
    v_and_b32 v51, 1, v0
    v_cvt_f32_u32 v{M01+1}, v51
    v_sub_f32 v{M01}, 1.0, v{M01+1}
    v_lshlrev_b32 v{LANE4}, 2, v0
    v_lshrrev_b32 v51, 3, v48
    v_lshrrev_b32 v52, 1, v49
    v_lshl_add_u32 v51, v51, 1, v52
    v_lshlrev_b32 v51, 8, v51
    v_lshl_add_u32 v51, v50, 4, v51
    v_and_b32 v52, 1, v49
    v_lshl_add_u32 v51, v52, 3, v51
    s_lshl_b32 s{sT0}, s{sB}, 10
    s_add_u32 s{sT0}, s{sT0}, {L_MEM}
    v_add_u32 v{NATA}, s{sT0}, v51
    s_mul_i32 s{sT0}, s{sW}, {RS_STRIDE}
    s_add_u32 s{sT0}, s{sT0}, {L_RS}
    v_add_u32 v{SW}, s{sT0}, v{LANE16}
    v_and_b32 v51, 3, v0
    v_mul_u32_u24 v52, {RS_STRIDE}, v51
    v_and_b32 v53, 60, v0
    v_add_u32 v52, v52, v53
    s_lshr_b32 s{sT0}, s{sW}, 1
    s_lshl_b32 s{sT0}, s{sT0}, 8
    s_and_b32 s{sT1}, s{sW}, 1
    s_lshl_b32 s{sT1}, s{sT1}, 6
    s_add_u32 s{sT0}, s{sT0}, s{sT1}
    s_add_u32 s{sT0}, s{sT0}, {L_RS}
    v_add_u32 v{SR}, s{sT0}, v52
    s_lshl_b32 s{sT0}, s{sW}, 6
    v_add_u32 v53, s{sT0}, v53
    v_cmp_eq_u32 vcc, 0, v51
    v_cndmask_b32 v{SO}, v54, v53, vcc
    v_lshlrev_b32 v51, 8, v51
    v_bfe_u32 v52, v0, 2, 3
    v_lshl_add_u32 v51, v52, 4, v51
    v_lshrrev_b32 v52, 5, v0
    v_lshl_add_u32 v51, v52, 3, v51
    v_add_u32 v{RED1R}, {L_RED1}, v51
    s_lshl_b32 s{sT0}, s{sW}, 11
    v_add_u32 v{RED2W}, s{sT0}, v{LANE16}
    v_lshrrev_b32 v52, 2, v0
    v_bfe_u32 v51, v0, 1, 1
    v_lshlrev_b32 v51, 8, v51
    v_lshl_add_u32 v51, v52, 4, v51
    v_and_b32 v53, 1, v0
    v_lshl_add_u32 v51, v53, 3, v51
    s_lshl_b32 s{sT0}, s{sW}, 9
    v_add_u32 v{RED2R}, s{sT0}, v51
    s_lshr_b32 s{sT0}, s{sW}, 1
    s_mul_i32 s{sT0}, s{sT0}, 14336
    s_and_b32 s{sT1}, s{sW}, 1
    s_lshl_b32 s{sT1}, s{sT1}, 4
    s_add_u32 s{sT0}, s{sT0}, s{sT1}
    v_mul_u32_u24 v52, 896, v52
    v_and_b32 v53, 3, v0
    v_lshl_add_u32 v52, v53, 2, v52
    v_add_u32 v{RES}, s{sT0}, v52
    """)
    pro.await_(A, [D_CA, 's35'], 60)
    once(A, 'ca')
    A(f"""
    v_and_b32 v58, 12, v{LANE4}
    s_mov_b32 s{sT0}, {PAR}
    buffer_load_dword v58, v58, s[8:11], s{sT0} offen sc1
    s_cmp_eq_u32 s{sB}, 7
    s_cbranch_scc1 LX
    """)
    def home():
        A(f"""
        v_cmp_ne_u32 vcc, 0, v58
        s_bcnt1_i32_b64 s3, vcc
        s_cmp_ge_u32 s3, 32
        s_cselect_b32 s3, 8192, 0
        s_lshl_b32 s{sT0}, s{sLAYER}, 13
        s_xor_b32 s3, s3, s{sT0}
        """)

    R = AW
    A(f"""
    v_and_b32 v51, 1, v48
    v_lshlrev_b32 v51, 4, v51
    v_mov_b32 v52, 0x3f80
    v_lshlrev_b32 v51, v51, v52
    v_bfe_u32 v52, v48, 2, 1
    v_and_b32 v53, 1, v49
    v_cmp_eq_u32 vcc, v52, v53
    v_cndmask_b32 v51, 0, v51, vcc
    v_lshrrev_b32 v52, 3, v48
    v_bfe_u32 v53, v48, 1, 1
    v_lshl_add_u32 v52, v52, 1, v53
    """)
    for d in range(4):
        A(f'v_cmp_eq_u32 vcc, {d}, v52\nv_cndmask_b32 v{SEL+d}, 0, v51, vcc')
    A(f's_lshl_b32 s{sT0}, s{sB}, 2\ns_add_u32 s{sFL}, s{sFL}, s{sT0}')
    A(f"""
    s_sub_u32 s{sT0}, 3, s{sW}
    s_mul_i32 s{sXD}, s{sT0}, {8*896}
    s_lshl_b32 s{sT1}, s{sW}, 7
    s_add_u32 s{sXD}, s{sXD}, s{sT1}
    s_and_b32 s{sXX}, s{sT0}, 1
    s_lshl_b32 s{sXX}, s{sXX}, 6
    s_lshl_b32 s{sXL}, s{sT0}, 10
    s_lshl_b32 s{sT1}, s{sW}, 12
    s_add_u32 s{sXL}, s{sXL}, s{sT1}
    """)
    job_offsets(A, R)
    home()
    A(f's_cmp_ge_u32 s{sJ}, 28\ns_cbranch_scc1 LB')
    def rest():
        for q in range(56):
            if q not in early: A(wload(q))
    A(f's_cmp_eq_u32 s{sLAYER}, 0\ns_cbranch_scc1 LA_l0')
    rest()
    A('LA_l0:')
    tails = [xs_load(A)]
    once(A, 'go')
    A(f's_cmp_eq_u32 s{sLAYER}, 0\ns_cbranch_scc0 LA_first')
    rest()
    assert OPT['f0'] <= 48
    A('s_branch LA_first\nLA_job:')
    A.reset()
    st('b1')
    G = GSeq(A, R, [(1, 0, 92), (1, 1, 64), (2, 0, 48), (2, 1, 64)])
    tails += pass0(A, R, G, st, 'LA')
    F0, F1 = OPT['f0'], OPT['f1']
    def g1_rest(G):
        o = kx_out(0, 92, 108) + job_offsets2(R); ops = G.ops(1)
        weave(A, ops[NF:F0], o, 2); take(A, o, 99)
        kx_flag(A, 0)
        weave(A, ops[F0:], [], 0)
    g1_rest(G)
    o = kx_out(1, 64, 104); ops = G.ops(2)
    weave(A, ops[:F1], o, 2, start=1); assert not o
    kx_flag(A, 1)
    weave(A, ops[F1:], [], 0)
    weave(A, G.ops(3), [], 0)
    v_out(A, 48, 64)
    st('gend')
    get_mem(A, R, regs(48, 32), st)
    N = [zop(R, hh, b) for b in range(7) for hh in (0, 2)] + [zop(R, 1, b) for b in range(7)]
    def fill(n): take(A, N, n)
    km(A, R, fill)
    s_reduce(A, fill, st, prd(0) + prd(1))
    st('ts')
    el = list(E_LOADS)
    while len(N) > 7:
        fill(1); take(A, el, 2)
    take(A, el, 9)
    zm = zmix(0)
    ops = []
    for b in range(7):
        if len(N) >= 7 - b: ops.append(N.pop(0))
        ops.append([zop(R, 3, b)] + (prd(b + 2) if b < 5 else []) + (S_LOADS[0] if b == OPT['spos'] else []))
    weave(A, ops, zm, 1, start=1)
    take(A, zm, 99)
    tails.append(finish(A, R, st))
    A('s_barrier')
    st('b3b')
    next_seg(A, 'LA_last')
    s_clear(A)
    flip_read(A)
    tails.append(xs_load(A, pre=[RES_LOAD]))
    st('end')
    st.flush(TMP, LANE4)
    A('s_branch LA_job')
    for t in tails: t()
    A('LB:\ns_waitcnt vmcnt(0)\nLB_job:')
    tails = [xs_load(A, both=False)]
    G = GSeq(A, R, [(1, 0, 92), (1, 1, 64)])
    G.start()
    o = kx_offset(R); weave(A, G.ops(0) + G.ops(1)[:NF], o, 2)
    g1_rest(G)
    take(A, kx_out(1, 64, 104), 99)
    kx_flag(A, 1)
    A(f"""
    s_add_u32 s{sT0}, s{sSEG}, {AHEAD}
    s_cmp_ge_u32 s{sT0}, 64
    s_cbranch_scc1 LB_noclr
    s_and_b32 s{sT1}, s{sH}, 3
    s_lshl_b32 s{sT1}, s{sT1}, 2
    s_add_u32 s{sT1}, s{sT1}, s{sW}
    s_lshl_b32 s{sT2}, s{sT0}, 14
    s_add_u32 s{sT2}, s{sT2}, s3
    s_lshl_b32 s63, s{sT1}, 10
    s_add_u32 s{sT2}, s{sT2}, s63
    s_cmp_lt_u32 s{sT1}, 7
    s_cselect_b32 s{sT2}, s{sT2}, {OOB}
    v_mov_b32 v64, -1
    v_mov_b32 v65, -1
    v_mov_b32 v66, -1
    v_mov_b32 v67, -1
    buffer_store_dwordx4 v[64:67], v{LANE16}, s[8:11], s{sT2} offen sc1
    s_mul_i32 s{sT0}, s{sT0}, 28672
    s_lshl_b32 s63, s{sT1}, 11
    s_add_u32 s{sT0}, s{sT0}, s63
    s_cmp_lt_u32 s{sT1}, 14
    s_cbranch_scc0 LB_noclr
    s_mul_i32 s{sT2}, s{sLAYER}, {XBYTES}
    s_add_u32 s{sT2}, s{sT2}, s{sT0}
    s_add_u32 s{sT2}, s{sT2}, {XA}
    buffer_store_dwordx4 v[64:67], v{LANE16}, s[8:11], s{sT2} offen sc1
    buffer_store_dwordx4 v[64:67], v{LANE16}, s[8:11], s{sT2} offen offset:1024 sc1
    s_cmp_eq_u32 s{sLAYER}, 0
    s_cbranch_scc0 LB_noclr
    s_add_u32 s{sT2}, s{sT0}, {XS1}
    buffer_store_dwordx4 v[64:67], v{LANE16}, s[8:11], s{sT2} offen sc1
    buffer_store_dwordx4 v[64:67], v{LANE16}, s[8:11], s{sT2} offen offset:1024 sc1
    s_add_u32 s{sT2}, s{sT0}, {XB}
    buffer_store_dwordx4 v[64:67], v{LANE16}, s[8:11], s{sT2} offen sc1
    buffer_store_dwordx4 v[64:67], v{LANE16}, s[8:11], s{sT2} offen offset:1024 sc1
    LB_noclr:
    """)
    nost = lambda n: None
    get_mem(A, R, regs(48, 16), nost)
    km(A, R, lambda n: None)
    s_reduce(A, lambda n: None, nost)
    next_seg(A, 'Lend')
    s_clear(A)
    flip_read(A)
    A('s_branch LB_job')
    for t in tails: t()

    R = XW
    A('LX:')
    home()
    ALW, EWA, STW, PMA = 20, 21, 22, 23
    A(f"""
    v_lshrrev_b32 v51, 1, v49
    v_and_b32 v52, 1, v49
    v_lshl_add_u32 v51, v52, 1, v51
    v_lshrrev_b32 v52, 2, v48
    v_lshl_add_u32 v52, v52, 3, v51
    v_lshlrev_b32 v52, 5, v52
    v_and_b32 v53, 3, v0
    v_lshl_add_u32 v52, v53, 2, v52
    s_lshr_b32 s{sT0}, s{sH}, 2
    s_lshl_b32 s{sT0}, s{sT0}, 11
    s_and_b32 s{sT1}, s{sH}, 1
    s_lshl_b32 s{sT1}, s{sT1}, 10
    s_add_u32 s{sT0}, s{sT0}, s{sT1}
    s_and_b32 s{sT1}, s{sH}, 2
    s_lshl_b32 s{sT1}, s{sT1}, 6
    s_add_u32 s{sT0}, s{sT0}, s{sT1}
    s_add_u32 s{sT0}, s{sT0}, 8192
    v_add_u32 v{EWA}, s{sT0}, v52
    s_lshl_b32 s{sT0}, s{sH}, 6
    s_add_u32 s{sT0}, s{sT0}, 16384
    v_lshlrev_b32 v51, 4, v51
    v_add_u32 v51, s{sT0}, v51
    v_cmp_eq_u32 vcc, 0, v48
    v_cndmask_b32 v{STW}, v54, v51, vcc
    s_lshr_b32 s{sT0}, s{sH}, 2
    s_lshl_b32 s{sT0}, s{sT0}, 12
    s_and_b32 s{sT1}, s{sH}, 3
    v_lshrrev_b32 v51, 1, v49
    v_and_b32 v52, 1, v49
    v_lshlrev_b32 v53, 4, v48
    v_add_u32 v53, s{sT0}, v53
    v_lshl_add_u32 v55, v51, 10, v53
    v_lshl_add_u32 v55, v52, 3, v55
    s_lshl_b32 s{sT0}, s{sT1}, 8
    v_add_u32 v{PMA}, s{sT0}, v55
    v_lshl_add_u32 v55, v51, 8, v53
    s_lshl_b32 s{sT0}, s{sT1}, 2
    s_add_u32 s{sT0}, s{sT0}, 2048
    v_add_u32 v55, s{sT0}, v55
    v_cmp_eq_u32 vcc, 0, v52
    v_cndmask_b32 v{ALW}, v54, v55, vcc
    v_lshlrev_b32 v51, 2, v49
    """)
    for r in range(4):
        A(f'v_add_u32 v52, {r}, v51\nv_cmp_le_u32 s[{sMASK(r)}:{sMASK(r)+1}], v52, v48')
    FLA = 26
    A(f'v_min_u32 v{FLA}, 24, v{LANE4}')
    zero(A, 48, 4)
    A(f'ds_write_b128 v{SW}, v[48:51]')
    tails = []
    for r in range(232, 236): A(f'v_mov_b32 v{r}, -1')
    A('s_waitcnt vmcnt(0) lgkmcnt(0)\ns_barrier\ns_branch LX_first\nLX_job:')
    A.reset()
    st('b1')
    G = GSeq(A, R, [(2, 0, 92), (2, 1, 64)])
    clr = [f'buffer_store_dword v232, v{SO}, s[8:11], s{sSC} offen']
    clr += [f'buffer_store_dword v232, v{EWA}, s[8:11], s{sEC} offen offset:{q*16}' for q in range(2)]
    clr += [f'buffer_store_dwordx4 v[232:235], v{STW}, s[8:11], s{sEC} offen']
    clr += [f'buffer_store_dwordx4 v[232:235], v{LANE16}, s[8:11], s{sKM if b < 4 else sKM2} offen offset:{(b&3)*1024}' for b in range(7)]
    tails += pass0(A, R, G, st, 'LX')
    FLD = f'buffer_load_dword v142, v{FLA}, s[8:11], s{sFL} offen sc1'
    ops = G.ops(1)
    o = job_offsets2(R); weave(A, ops[NF:52], o, 2); take(A, o, 99)
    A(FLD)
    weave(A, ops[52:], [], 0)
    S00, S10, S11 = 120, 124, 128
    MX, SX = 140, 141
    KX = lambda t, kt, n=4: v(144 + kt * 56 + t * 4, n)
    def kxwait(kt):
        D = A.newlabel('kxok')
        c = f'v_cmp_gt_i32 vcc, s{sT0}, v142'
        A(f's_lshl_b32 s{sT0}, s{sN}, 1\ns_or_b32 s{sT0}, s{sT0}, {kt}\n{c}\ns_cbranch_vccz {D}')
        poll(A, [FLD], None, None, cmp=c)
        A(f'{D}:\ns_mov_b32 s{sT1}, s{sKX}')
        for t in range(14):
            A(f'buffer_load_dwordx4 {KX(t,kt)}, v{LANE16}, s[8:11], s{sT1} offen offset:{(t&1)*2048+kt*1024} sc1')
            if t & 1 and t < 13: A(f's_add_u32 s{sT1}, s{sT1}, 4096')
    kxwait(0)
    st('kx0')
    fr = lambda t, mt: 80 + ((t % 3) * 2 + mt) * 4
    v_out(A, 92, 64)
    for t in range(2): xs_read(A, fr(t, 0), t, 0); xs_read(A, fr(t, 1), t, 1)
    for t in range(14):
        for D, mt in ((S00, 0), (S10, 1)):
            A(f'{MF} {v(D,4)}, {KX(t,0)}, {v(fr(t,mt),4)}, {"0" if t == 0 else v(D,4)}')
            if t < 12: xs_read(A, fr(t + 2, mt), t + 2, mt)
        if t == 10: A(FLD)
    for t in range(14): xs_read(A, 48 + 4 * t, t, 1)
    kxwait(1)
    st('kx1')
    for t in range(14):
        A(f'{MF} {v(S11,4)}, {KX(t,1)}, {v(48+4*t,4)}, {"0" if t == 0 else v(S11,4)}')
    st('sxx')
    A(f'v_mov_b32 v{TMP}, 0xff800000')
    for D in (S00, S11):
        for r in range(4): A(f'v_cndmask_b32 v{D+r}, v{TMP}, v{D+r}, s[{sMASK(r)}:{sMASK(r)+1}]')
    A(f"""
    v_max3_f32 v132, v{S00}, v{S00+1}, v{S00+2}
    v_max3_f32 v134, v{S10}, v{S10+1}, v{S10+2}
    v_max_f32 v132, v132, v{S00+3}
    v_max3_f32 v134, v134, v{S10+3}, v{S11}
    v_max3_f32 v134, v134, v{S11+1}, v{S11+2}
    v_max_f32 v134, v134, v{S11+3}
    v_permlane32_swap_b32 v132, v134
    v_max_f32 v{MX}, v132, v134
    v_mov_b32 v132, v{MX}
    v_permlane16_swap_b32 v{MX}, v132
    v_max_f32 v{MX}, v{MX}, v132
    v_mov_b32 v132, v{MX}
    v_mov_b32 v134, v{MX}
    v_permlane32_swap_b32 v132, v134
    """)
    for D, m in ((S00, 132), (S10, 134), (S11, 134)):
        for p in range(2): A(f'v_pk_add_f32 {v(D+2*p,2)}, {v(D+2*p,2)}, {v(m,2)} op_sel_hi:[1,0] neg_lo:[0,1] neg_hi:[0,1]')
    for r in range(S00, S00 + 12): A(f'v_exp_f32 v{r}, v{r}')
    for r in range(4): A(f'v_cvt_pk_bf16_f32 v{48+r}, v{S00+r}, 0')
    for r in range(4): A(f'v_cvt_pk_bf16_f32 v{52+r}, v{S10+r}, v{S11+r}')
    A(f"""
    buffer_store_dwordx4 v[48:51], v{LANE16}, s[8:11], s{sPW} offen
    buffer_store_dwordx4 v[52:55], v{LANE16}, s[8:11], s{sPW} offen offset:1024
    v_pk_add_f32 v[132:133], {v(S00,2)}, {v(S00+2,2)}
    v_pk_add_f32 v[134:135], {v(S10,2)}, {v(S10+2,2)}
    v_pk_add_f32 v[134:135], v[134:135], {v(S11,2)}
    v_pk_add_f32 v[134:135], v[134:135], {v(S11+2,2)}
    v_add_f32 v132, v132, v133
    v_add_f32 v134, v134, v135
    v_permlane32_swap_b32 v132, v134
    v_add_f32 v{SX}, v132, v134
    """)
    st('gend')
    get_mem(A, R, regs(48, 8) + regs(ZACC, 16), st)
    for b in range(7):
        for kt in range(2):
            A(f'{SM} {v(48+4*kt,4)}, {v(FR+4*b,4)}, {KX(2*b,kt,8)}, v{IDX}')
    N = [zop(R, hh, b) for b in range(7) for hh in (0, 2)] + [zop(R, hh, b) for b in range(7) for hh in (1, 3)]
    def fill(n): take(A, N, n)
    fill(2)
    for kt in range(2):
        for z in range(2): A(f'v_permlane32_swap_b32 v{48+4*kt+z}, v{50+4*kt+z}')
    for r in (48, 52, 49, 53): A(f'v_add_f32 v{r}, v{r}, v{r+2}')
    A('v_max_f32 v56, v48, v52\nv_max_f32 v57, v49, v53')
    for k in (8, 4, 2, 1):
        fill(1)
        for z in range(2): A(f'v_max_f32_dpp v{56+z}, v{56+z}, v{56+z} row_ror:{k} {DPP}')
    A("""
    v_sub_f32 v48, v48, v56
    v_sub_f32 v52, v52, v56
    v_sub_f32 v49, v49, v57
    v_sub_f32 v53, v53, v57
    v_exp_f32 v48, v48
    v_exp_f32 v52, v52
    v_exp_f32 v49, v49
    v_exp_f32 v53, v53
    v_cvt_pk_bf16_f32 v50, v48, v52
    v_cvt_pk_bf16_f32 v51, v49, v53
    """)
    A(f'buffer_store_dword v50, v{EWA}, s[8:11], s{sEW} offen\nbuffer_store_dword v51, v{EWA}, s[8:11], s{sEW} offen offset:16')
    A('v_add_f32 v48, v48, v52\nv_add_f32 v49, v49, v53\nv_mov_b32 v60, v56\nv_mov_b32 v62, v57')
    for k in (8, 4, 2, 1):
        for z in range(2): A(f'v_add_f32_dpp v{48+z}, v{48+z}, v{48+z} row_ror:{k} {DPP}')
        fill(1)
    A(f"""
    v_mul_f32 v61, 0.5, v48
    v_mul_f32 v63, 0.5, v49
    buffer_store_dwordx4 v[60:63], v{STW}, s[8:11], s{sEW} offen
    """)
    s_reduce(A, fill, st)
    st('ts')
    for t in E_LOADS: A(t)
    zm = zmix(0)
    assert len(N) <= 10
    weave(A, list(N), zm, 1, start=1)
    take(A, zm, 99)
    for k in range(OPT['xpad']): A(f'v_mov_b32 v{TMP}, 0\ns_nop 2')
    for t in S_LOADS[0]: A(t)
    KMR = lambda b: 144 + 4 * b
    kml = [f'buffer_load_dwordx4 {v(KMR(b),4)}, v{LANE16}, s[8:11], s{sKM if b < 4 else sKM2} offen offset:{(b&3)*1024} sc1' for b in range(7)]
    tails.append(finish(A, R, st, kml))
    fr = lambda t, mt: 200 + ((t % 3) * 2 + mt) * 4
    A0, B0, A1, B1 = 172, 176, 180, 184
    A(f's_mov_b32 s{SCNT}, 0')
    for r in range(232, 236): A(f'v_mov_b32 v{r}, -1')
    A(f'buffer_store_dwordx2 v[232:233], v{PMA}, s[8:11], s{sPMC} offen')
    A(f'buffer_store_dword v232, v{ALW}, s[8:11], s{sPMC} offen')
    A('s_barrier')
    st('b3b')
    A(f's_add_u32 s{sSEG}, s{sSEG}, 3\nLX_km:')
    for t in range(2): xs_read(A, fr(t, 0), t, 0); xs_read(A, fr(t, 1), t, 1)
    for t in range(14):
        for D, mt in (((A0, A1)[t & 1], 0), ((B0, B1)[t & 1], 1)):
            A(f'{MF} {v(D,4)}, {v(KMR(t>>1),4)}, {v(fr(t,mt),4)}, {"0" if t < 2 else v(D,4)}')
            if t < 12: xs_read(A, fr(t + 2, mt), t + 2, mt)
    for r in range(4): A(f'v_permlane32_swap_b32 v{A1+r}, v{B0+r}')
    for r in range(4): A(f'v_add_f32 v{A0+r}, v{A0+r}, v{B0+r}')
    for r in range(4): A(f'v_add_f32 v{B1+r}, v{B1+r}, v{A1+r}')
    Y = A0
    for r in range(4): A(f'v_cndmask_b32 v{Y+r}, v{B1+r}, v{A0+r}, s[{sLO32}:{sLO32+1}]')
    A(f"""
    v_max3_f32 v188, v{Y}, v{Y+1}, v{Y+2}
    v_max3_f32 v188, v188, v{Y+3}, v{MX}
    v_mov_b32 v190, v188
    v_pk_add_f32 v[192:193], {v(Y,2)}, {v(Y+2,2)}
    v_cmp_u_f32 vcc, v192, v193
    s_cbranch_vccnz LX_kmchk
    LX_kmok:
    v_permlane16_swap_b32 v188, v190
    v_max_f32 v188, v188, v190
    v_sub_f32 v190, v{MX}, v188
    v_pk_add_f32 {v(Y,2)}, {v(Y,2)}, v[188:189] op_sel_hi:[1,0] neg_lo:[0,1] neg_hi:[0,1]
    v_pk_add_f32 {v(Y+2,2)}, {v(Y+2,2)}, v[188:189] op_sel_hi:[1,0] neg_lo:[0,1] neg_hi:[0,1]
    v_exp_f32 v{Y}, v{Y}
    v_exp_f32 v{Y+1}, v{Y+1}
    v_exp_f32 v{Y+2}, v{Y+2}
    v_exp_f32 v{Y+3}, v{Y+3}
    v_exp_f32 v190, v190
    v_pk_add_f32 v[192:193], {v(Y,2)}, {v(Y+2,2)}
    v_add_f32 v192, v192, v193
    v_fmac_f32 v192, v190, v{SX}
    v_mov_b32 v193, v192
    v_permlane16_swap_b32 v192, v193
    v_add_f32 v192, v192, v193
    v_rcp_f32 v192, v192
    v_pk_mul_f32 {v(Y,2)}, {v(Y,2)}, v[192:193] op_sel_hi:[1,0]
    v_pk_mul_f32 {v(Y+2,2)}, {v(Y+2,2)}, v[192:193] op_sel_hi:[1,0]
    v_mul_f32 v190, v190, v192
    v_cvt_pk_bf16_f32 v188, v{Y}, v{Y+1}
    v_cvt_pk_bf16_f32 v189, v{Y+2}, v{Y+3}
    s_waitcnt vmcnt(0)
    buffer_store_dwordx2 v[188:189], v{PMA}, s[8:11], s{sPMW} offen
    buffer_store_dword v190, v{ALW}, s[8:11], s{sPMW} offen
    """)
    st('lp')
    A(f's_cmp_ge_u32 s{sSEG}, {NSEG}\ns_cbranch_scc1 LX_last')
    A(RES_LOAD)
    for t in clr: A(t)
    flip_read(A)
    A('s_barrier')
    st('end')
    st.flush(TMP, LANE4)
    A('s_branch LX_job')
    for t in tails: t()
    A('LX_kmchk:')
    check(A, regs(144, 28), TMP)
    A('s_cbranch_vccz LX_kmok')
    for t in kml: A(t)
    A(f's_add_u32 s{SCNT}, s{SCNT}, 1\ns_cmp_gt_u32 s{SCNT}, {TIMEOUT}\ns_cbranch_scc1 Lfail\ns_waitcnt vmcnt(0)\ns_branch LX_km')
```

```python
from asmlib import *
from layout import *
TIMEOUT = 1 << 17
SCNT = 70

def regs(base, n): return list(range(base, base + n))

def check(A, rs, tmp):
    rs = list(rs)
    if len(rs) == 1:
        A(f'v_cmp_eq_u32 vcc, -1, v{rs[0]}'); return
    if len(rs) == 2:
        A(f'v_max_u32 v{tmp}, v{rs[0]}, v{rs[1]}'); rs = []
    else:
        A(f'v_max3_u32 v{tmp}, v{rs[0]}, v{rs[1]}, v{rs[2]}'); rs = rs[3:]
    while len(rs) >= 2:
        A(f'v_max3_u32 v{tmp}, v{tmp}, v{rs[0]}, v{rs[1]}'); rs = rs[2:]
    if rs: A(f'v_max_u32 v{tmp}, v{tmp}, v{rs[0]}')
    A(f'v_cmp_eq_u32 vcc, -1, v{tmp}')

def poll(A, loads, rs, tmp, cmp=None, sleep=0, body=None):
    L = A.newlabel('poll')
    A(f's_mov_b32 s{SCNT}, 0\n{L}:')
    if sleep: A(f's_sleep {sleep}')
    for t in loads: A(t)
    A(f's_add_u32 s{SCNT}, s{SCNT}, 1\ns_cmp_gt_u32 s{SCNT}, {TIMEOUT}\ns_cbranch_scc1 Lfail')
    if body: body()
    if cmp: A(cmp)
    else: check(A, rs, tmp)
    A(f's_cbranch_vccnz {L}')

def poll2(A, light, lrs, full, frs, tmp):
    L = A.newlabel('full'); M = A.newlabel('light'); D = A.newlabel('got')
    A(f's_mov_b32 s{SCNT}, 0\n{L}:')
    for t in full: A(t)
    check(A, frs, tmp)
    A(f's_cbranch_vccz {D}\n{M}:')
    for t in light: A(t)
    A(f's_add_u32 s{SCNT}, s{SCNT}, 1\ns_cmp_gt_u32 s{SCNT}, {TIMEOUT}\ns_cbranch_scc1 Lfail')
    check(A, lrs, tmp)
    A(f's_cbranch_vccnz {M}\ns_branch {L}\n{D}:')

def xg(A, op, x, t):
    A(f'v_mov_b32 v{t}, v{x}\nv_permlane16_swap_b32 v{x}, v{t}\n{op} v{x}, v{x}, v{t}')
    A(f'v_mov_b32 v{t}, v{x}\nv_permlane32_swap_b32 v{x}, v{t}\n{op} v{x}, v{x}, v{t}')

def barrier(A):
    A('s_waitcnt lgkmcnt(0)\ns_barrier')

class Stamps:
    def __init__(self, A, opts, key):
        self.A = A
        o = [x for x in opts if x.startswith(key + '=')]
        self.names = o[0].split('=')[1].split(',') if o else []
        self.on = bool(self.names)
        self.op = 's_memrealtime' if 'rt' in opts else 's_memtime'
    def init(self):
        if not self.on: return
        self.A(f"""
        s_lshl_b32 s90, s21, 5
        s_add_u32 s90, s90, s22
        s_lshl_b32 s90, s90, 2
        s_add_u32 s90, s90, s20
        s_lshl_b32 s90, s90, 12
        s_add_u32 s90, s90, {DBG}
        """)
    def __call__(self, name):
        if name not in self.names: return
        k = self.names.index(name) + 1
        if k == 1: self.A('s_memrealtime s[72:73]')
        self.A(f'{self.op} s[{72+2*k}:{73+2*k}]')
    def flush(self, t, lane4):
        if not self.on: return
        A = self.A
        A('s_waitcnt lgkmcnt(0)')
        for k in range(len(self.names) + 1): A(f'v_writelane_b32 v{t}, s{72+2*k}, {k}')
        A(f's_mov_b64 exec, 0xffff\nbuffer_store_dword v{t}, v{lane4}, s[8:11], s90 offen\ns_mov_b64 exec, -1')
        A('s_add_u32 s90, s90, 64')

def weave(A, mf, va, per, start=0):
    acc = 0.0
    for i, m in enumerate(mf):
        for t in (m if isinstance(m, list) else [m]): A(t)
        if i >= start:
            acc += per
            while acc >= 1 and va:
                A(va.pop(0)); acc -= 1

def take(A, va, n):
    for _ in range(n):
        if va: A(va.pop(0))

ONCE = []
def once(A, name):
    if name in ONCE:
        k = 72 + 2 * ONCE.index(name)
        A(f's_memrealtime s[{k}:{k+1}]\ns_waitcnt lgkmcnt(0)')
```

```python
XBYTES = 2048 * 896
WBYTES = 16 * 28 * 14 * 1024
MEM   = 0
TEAMB = 65 * 16384
KM_SLOT = 16 * 7 * 1024
T_KM  = 0
P_SLOT = 4 * 4096
T_P   = 2 * KM_SLOT
T_FL  = T_P + 2 * P_SLOT
SE_SLOT = 8192 + 8192 + 1024
T_SE  = T_FL + 2048
TEAM_STRIDE = T_SE + 4 * SE_SLOT
PART_SLOT = 14 * 32768
TCLR_N = -(-TEAM_STRIDE // (32 * 4096))
TEAM_STRIDE = TCLR_N * 32 * 4096
XA    = TEAMB + 8 * TEAM_STRIDE
XS1   = XA + 2 * XBYTES
XB    = XS1 + XBYTES
XS0   = XB + XBYTES
AHEAD = 4
WB    = XS0 + XBYTES
BIG   = WB + WBYTES
BIG_STRIDE = 4 * PART_SLOT
B_EX  = 2 * 16 * 28672
PAR   = BIG + 8 * BIG_STRIDE
DBG   = PAR + 4096
WS_USED = DBG + (4 << 20)
D_CB, D_CA, D_CT, D_FAIL = 4, 8, 12, 20
if __name__ == '__main__':
    for k, x in list(globals().items()):
        if isinstance(x, int): print(k, x, hex(x))
```

```python
from asmlib import *
from layout import *
from pro import srd, fbits
import mlp, attn, pro, common
from common import once

LDS_BYTES = 163840
TIMEOUT = 1 << 17

def gen_main(A, opts):
    for o in opts:
        if o.startswith('once='): common.ONCE[:] = o[5:].split(',')
        if o.startswith('nt='):
            for k in pro.NT: pro.NT[k] = ' nt' if k in o[3:] else ''
    dbg = bool(common.ONCE)
    A(f"""
    s_cmp_ge_u32 s2, 256
    s_cbranch_scc1 Lend
    s_load_dwordx2 s[4:5], s[0:1], 0
    s_load_dwordx2 s[6:7], s[0:1], 112
    s_load_dwordx8 s[36:43], s[0:1], 64
    s_load_dwordx4 s[44:47], s[0:1], 96
    s_load_dwordx8 s[92:99], s[0:1], 16
    s_load_dwordx2 s[100:101], s[0:1], 8
    {'s_memrealtime s[88:89]' if dbg else ''}
    s_getreg_b32 s21, hwreg(HW_REG_XCC_ID)
    s_and_b32 s21, s21, 7
    v_lshrrev_b32 v2, 6, v0
    v_and_b32 v0, 63, v0
    v_readfirstlane_b32 s20, v2
    v_mov_b32 v3, 0
    s_waitcnt lgkmcnt(0)
    s_cmp_lg_u32 s20, 0
    s_cbranch_scc1 Lnorank
    s_lshl_b32 s22, s21, 5
    v_mov_b32 v4, s22
    v_mov_b32 v5, 1
    s_mov_b64 exec, 1
    global_atomic_add v6, v4, v5, s[46:47] sc0
    ds_write_b32 v3, v6
    s_waitcnt lgkmcnt(0)
    s_mov_b64 exec, -1
    Lnorank:
    s_barrier
    ds_read_b32 v6, v3
    """)
    srd(A, 8, 6, WS_USED)
    A(f"""
    s_lshr_b32 s23, s21, 2
    s_and_b32 s24, s21, 3
    v_lshlrev_b32 v1, 4, v0
    s_mul_i32 s30, s21, {TEAM_STRIDE}
    s_add_u32 s30, s30, {TEAMB}
    s_mul_i32 s31, s21, {BIG_STRIDE}
    s_add_u32 s31, s31, {BIG}
    v_readfirstlane_b32 s22, v6
    s_barrier
    s_cmp_ge_u32 s22, 32
    s_cbranch_scc1 Lend
    """)
    pro.team_clear(A)
    A(f"""
    s_cmp_lt_u32 s21, 3
    s_cbranch_scc1 Lattn
    s_cmp_eq_u32 s21, 3
    s_cbranch_scc1 Lln
    s_cmp_ge_u32 s22, 28
    s_cbranch_scc1 Lnobt
    """)
    pro.btask(A)
    once(A, 'bt')
    A('Lnobt:\ns_cmp_lg_u32 s21, 7\ns_cbranch_scc1 Lattn')
    A('s_branch Lmlp\nLln:')
    pro.lntask(A)
    once(A, 'clr')
    A('s_branch Lmlp\nLattn:')
    attn.gen_attn(A, opts)
    A('Lmlp:')
    mlp.gen_mlp(A, opts)
    A("""
    Lfail:
    s_mov_b64 exec, 1
    v_mov_b32 v2, 20
    v_mov_b32 v3, 1
    global_atomic_add v2, v3, s[46:47]
    s_endpgm
    Ldone:
    """)
    if dbg:
        once(A, 'end')
        A(f"""
        s_mov_b64 exec, -1
        s_lshl_b32 s58, s21, 5
        s_add_u32 s58, s58, s22
        s_lshl_b32 s58, s58, 2
        s_add_u32 s58, s58, s20
        s_lshl_b32 s58, s58, 6
        s_add_u32 s58, s58, {DBG}
        v_lshrrev_b32 v3, 2, v1
        """)
        for k in range(9): A(f'v_writelane_b32 v2, s{72+2*k}, {k}')
        A('s_mov_b64 exec, 0xffff\nbuffer_store_dword v2, v3, s[8:11], s58 offen')
    A('Lend:\ns_endpgm')
```

```python
from asmlib import *
from layout import *
from common import *
from pro import srd, fbits
import pro
import math

L_X, L_H, L_ST, L_RB = 0, 28672, 36864, 37888
sW, sXCC, sRANK, sLAYER, sTEAM, sGRP, sRHO, _s27, sSEG, sN, sTB, sBIG = range(20, 32)
sXA, sPART, sFLW, sFLR, sRD, sOUT, sT0, sT1, sXSO = 32, 33, 34, 35, 48, 49, 58, 59, 50
sM56 = 68
sPH, sROW, sLP, sXL = 64, 65, 66, 67
NEG = 220
XR0 = 228
TGA = 173
sDIR = 71
sCT = 3
sXK = lambda k: 91 + k
sTAG = 27
LANE16, XW_, XR, HW_, STW, STR, PST, LANE4, RESA, TMP, RBW, RBR, ONE2, SELLO, SELHI = range(1, 16)
B1, CS, B2 = 16, 24, 32
MF = 'v_mfma_f32_16x16x32_bf16'
W1 = lambda tt, t, n=4: a(tt * 56 + t * 4, n)
W2 = lambda ct, ks, n=4: a(112 + (ct * 4 + ks) * 4, n)

def wavesum(A, rs, t):
    for m in ('quad_perm:[1,0,3,2]', 'quad_perm:[2,3,0,1]', 'row_half_mirror', 'row_mirror'):
        for r in rs: A(f'v_add_f32_dpp v{r}, v{r}, v{r} {m} row_mask:0xf bank_mask:0xf')
    for r in rs: xg(A, 'v_add_f32', r, t)

OPT = dict(ga=2.6, gb=1.6)
def gen_mlp(A, opts):
    for o in opts:
        k, _, x = o.partition('=')
        if k in OPT: OPT[k] = float(x)
    st = Stamps(A, opts, 'mst')
    st.init()
    A(f's_mov_b32 s{sCT}, s35')
    A(f"""
    s_lshr_b32 s{sGRP}, s{sRANK}, 4
    s_and_b32 s{sRHO}, s{sRANK}, 15
    s_mov_b32 s{sSEG}, s{sGRP}
    s_mov_b32 s{sN}, 0
    s_mov_b32 s{sM56}, -1
    s_mov_b32 s{sM56+1}, 0x00ffffff
    s_lshl_b32 s{sFLR}, s{sGRP}, 8
    s_add_u32 s{sFLR}, s{sFLR}, s{sTB}
    s_add_u32 s{sFLR}, s{sFLR}, {T_FL}
    s_lshl_b32 s{sT0}, s{sRHO}, 2
    s_add_u32 s{sT0}, s{sT0}, s{sW}
    s_lshl_b32 s{sT0}, s{sT0}, 2
    s_add_u32 s{sFLW}, s{sFLR}, s{sT0}
    s_mul_i32 s{sT0}, s{sGRP}, {2*PART_SLOT}
    s_add_u32 s{sBIG}, s{sBIG}, s{sT0}
    s_add_u32 s{sT0}, s6, {XB}
    s_addc_u32 s{sT1}, s7, 0
    s_cmp_eq_u32 s{sLAYER}, 0
    s_cselect_b32 s12, s{sT0}, s44
    s_cselect_b32 s13, s{sT1}, s45
    s_mov_b32 s14, {XBYTES}
    s_mov_b32 s15, 0x20000
    v_and_b32 v48, 15, v0                   ; n
    v_lshrrev_b32 v49, 4, v0                ; g
    s_lshl_b32 s{sT0}, s{sW}, 10
    v_add_u32 v{XW_}, s{sT0}, v{LANE16}
    v_lshrrev_b32 v50, 1, v49
    v_lshlrev_b32 v50, 10, v50
    v_and_b32 v51, 1, v49
    v_lshl_add_u32 v50, v51, 8, v50
    v_lshl_add_u32 v{XR}, v48, 4, v50
    s_lshl_b32 s{sT0}, s{sW}, 11
    v_add_u32 v{HW_}, s{sT0}, v{LANE16}
    v_lshrrev_b32 v50, 5, v0
    v_lshlrev_b32 v50, 9, v50
    v_lshl_add_u32 v{STR}, v48, 4, v50
    s_lshl_b32 s{sT0}, s{sW}, 2
    v_add_u32 v{STW}, s{sT0}, v{LANE16}
    v_lshlrev_b32 v50, 12, v49
    v_lshl_add_u32 v50, v48, 4, v50
    s_lshl_b32 s{sT0}, s{sW}, 8
    v_add_u32 v{PST}, s{sT0}, v50
    v_lshlrev_b32 v{LANE4}, 2, v0
    s_and_b32 s{sT0}, s{sW}, 1
    s_cmp_ge_u32 s{sRHO}, 14
    s_cselect_b32 s{sDIR}, 2, s{sT0}
    s_lshl_b32 s60, s{sT0}, 4
    s_add_u32 s60, s60, s{sRHO}             ; token
    s_mul_i32 s{sLP}, s{sRHO}, 37
    s_lshr_b32 s{sLP}, s{sLP}, 8
    s_mul_i32 s{sLP}, s{sLP}, 7
    s_sub_u32 s{sLP}, s{sRHO}, s{sLP}
    s_lshr_b32 s{sPH}, s{sW}, 1
    s_mul_i32 s{sROW}, s60, 896
    s_lshl_b32 s{sRD}, s60, 10
    s_mul_i32 s{sT1}, s{sPH}, {7*32768}
    s_add_u32 s{sRD}, s{sRD}, s{sT1}
    s_mul_i32 s{sT0}, s{sT0}, 1792
    s_add_u32 s{sT0}, s{sT0}, {L_RB}
    v_lshlrev_b32 v50, 5, v0
    v_add_u32 v{RBR}, s{sT0}, v50
    v_mul_u32_u24 v50, 112, v49
    v_add_lshl_u32 v50, v50, v48, 2
    s_mul_i32 s{sT0}, s{sW}, 1792
    s_add_u32 s{sT0}, s{sT0}, {L_RB}
    v_add_u32 v{RBW}, s{sT0}, v50
    v_lshrrev_b32 v51, 1, v0
    v_lshlrev_b32 v51, 10, v51
    v_and_b32 v52, 1, v0
    v_lshl_add_u32 v51, v52, 8, v51
    s_lshr_b32 s{sT1}, s60, 4
    s_lshl_b32 s{sT1}, s{sT1}, 9
    s_and_b32 s62, s60, 15
    s_lshl_b32 s62, s62, 4
    s_add_u32 s{sT1}, s{sT1}, s62
    v_add_u32 v51, s{sT1}, v51
    v_mov_b32 v52, 0x40000000
    v_cndmask_b32 v{RESA}, v52, v51, s[{sM56}:{sM56+1}]
    v_lshrrev_b32 v51, 2, v0
    v_min_u32 v51, 6, v51
    v_lshlrev_b32 v51, 15, v51
    v_and_b32 v52, 3, v0
    v_lshl_add_u32 v51, v52, 8, v51
    v_add_u32 v{TGA}, 252, v51
    v_mov_b32 v{ONE2}, 0x3f803f80
    v_mov_b32 v{SELLO}, 0x3f80
    v_mov_b32 v{SELHI}, 0x3f800000
    """)
    srd(A, 16, 42, 896)
    A(f'buffer_load_dwordx4 v[40:43], v{LANE16}, s[16:19], 0 offen')
    for r in range(NEG, NEG + 4): A(f'v_mov_b32 v{r}, 0')
    A(f's_add_u32 s{sT0}, s{sBIG}, s{sRD}')
    for k in range(14):
        A(f'buffer_store_dwordx4 {v(NEG,4)}, v{LANE16}, s[8:11], s{sT0} offen')
        A(f's_add_u32 s{sT0}, s{sT0}, {32768 if k != 6 else PART_SLOT - 6*32768}')
    for d in range(4):
        A(f'v_lshlrev_b32 v{B2+2*d}, 16, v{40+d}\nv_and_b32 v{B2+2*d+1}, 0xffff0000, v{40+d}')
    c1 = -2 * math.sqrt(2 / math.pi) * math.log2(math.e)
    consts = f's_mov_b32 s60, {fbits(1/448)}\ns_mov_b32 s61, {fbits(1e-5)}\ns_mov_b32 s62, {fbits(c1*0.044715)}\ns_mov_b32 s63, {fbits(c1)}'
    A(f"""
    s_mul_i32 s{sT0}, s{sSEG}, 28672
    s_mul_i32 s{sXA}, s{sLAYER}, {XBYTES}
    s_add_u32 s{sXA}, s{sXA}, s{sT0}
    s_add_u32 s{sXA}, s{sXA}, {XA}
    {consts}
    """)
    A(f's_cmp_ge_u32 s{sRHO}, 14\ns_cbranch_scc1 LM_go')
    srd(A, 16, 36, 448 * 3584)
    A(f"""
    v_mul_u32_u24 v50, 3584, v49
    v_lshl_add_u32 v50, v48, 4, v50
    s_mul_i32 s62, s{sW}, {112*3584}
    s_lshl_b32 s{sT0}, s{sRHO}, 8
    s_add_u32 s62, s62, s{sT0}
    s_mul_i32 s63, s{sW}, {112*256}
    s_mov_b32 m0, s63
    """)
    for k in range(28):
        A(f'buffer_load_dwordx4 v50, s[16:19], s62 offen{pro.NT["m"]} lds')
        if k < 27: A(f's_add_u32 s62, s62, {4*3584}\ns_add_u32 m0, m0, 1024')
    srd(A, 16, 40, 1792 * 896)
    A(f's_mul_i32 s62, s{sRHO}, {128*896}\ns_add_u32 s62, s62, s63')
    for k in range(28):
        A(f'buffer_load_dwordx4 {v(60+4*k,4)}, v{LANE16}, s[16:19], s62 offen offset:{(k&3)*1024}{pro.NT["m"]}')
        if k & 3 == 3: A('s_add_u32 s62, s62, 4096')
    srd(A, 16, 38, 3584)
    A(f"""
    s_lshl_b32 s{sT1}, s{sW}, 6
    s_add_u32 s{sT0}, s{sT0}, s{sT1}
    v_lshlrev_b32 v50, 4, v49
    buffer_load_dwordx4 v[40:43], v50, s[16:19], s{sT0} offen
    v_bfe_u32 v51, v0, 2, 2                 ; r
    v_lshl_add_u32 v51, v49, 3, v51         ; 8g + r
    v_and_b32 v52, 3, v0                    ; cc
    v_lshlrev_b32 v53, 8, v51
    v_lshl_add_u32 v53, v52, 4, v53
    v_add_u32 v53, s{sT1}, v53
    v_add_u32 v54, 0xe000, v53
    v_add_u32 v55, s63, v{LANE16}
    s_waitcnt vmcnt(29)
    s_barrier
    """)
    for t in range(14):
        for tt in range(2):
            for z in range(2):
                o = t * 8192 + z * 1024 + tt * 8
                base = 53 if t < 7 else 54
                A(f'ds_read_b64_tr_b16 {a(tt*56+t*4+2*z,2)}, v{base} offset:{o - (0 if t < 7 else 0xe000)}')
    barrier(A)
    for k in range(28): A(f'ds_write_b128 v55, {v(60+4*k,4)} offset:{k*1024}')
    for d in range(4):
        A(f'v_lshlrev_b32 v{B1+2*d}, 16, v{40+d}\nv_and_b32 v{B1+2*d+1}, 0xffff0000, v{40+d}')
    for r in range(40, 44): A(f'v_mov_b32 v{r}, v{ONE2}')
    for t in range(14):
        for tt in range(2):
            A(f'{MF} {v(CS+4*tt,4)}, {W1(tt,t)}, v[40:43], {"0" if t == 0 else v(CS+4*tt,4)}')
    A(f"""
    v_mul_u32_u24 v53, 896, v51
    s_mul_i32 s{sT0}, s{sW}, 224
    v_add_u32 v53, s{sT0}, v53
    v_lshl_add_u32 v53, v52, 3, v53
    v_add_u32 v54, {64*896}, v53
    s_waitcnt lgkmcnt(0)
    s_barrier
    """)
    for ks in range(4):
        for ct in range(7):
            for z in range(2):
                o = (ks & 1) * 32 * 896 + z * 4 * 896 + ct * 32
                base = 53 + (ks >> 1)
                A(f'ds_read_b64_tr_b16 {a(112+(ct*4+ks)*4+2*z,2)}, v{base} offset:{o}')
    barrier(A)

    A(consts)
    once(A, 'ac')
    A('LM_go:')
    pro.arrive_issue(A, f's{sCT}', 56); pro.arrive_finish(A, 32, 56)
    pro.await_(A, [D_CA, f's{sCT}'], 56)
    once(A, 'ca')
    A(f"""
    v_mov_b32 v{TMP}, 1
    s_mov_b64 exec, 1
    buffer_store_dword v{TMP}, off, s[8:11], s{sFLW}
    s_mov_b64 exec, -1
    """)
    ld = lambda k: f'buffer_load_dwordx4 {v(XR0+4*k,4)}, v{XW_}, s[8:11], s{sXK(k)} offen sc1'
    xoff = lambda add: [f's_add_u32 s{sXK(k)}, s{sXA}, {add + k*4096}' for k in range(7)]
    for t in xoff(0) + [ld(k) for k in range(7)]: A(t)
    once(A, 'go')
    A('s_waitcnt vmcnt(0)')
    A('LM_job:')
    st('job')
    RESV = 168
    resld = f'buffer_load_dwordx4 {v(RESV,4)}, v{RESA}, s[8:11], s{sXA} offen sc1'
    offs = f"""s_mul_i32 s{sT0}, s{sSEG}, 28672
    s_add_u32 s{sOUT}, s{sT0}, s{sROW}
    s_add_u32 s{sXSO}, s{sOUT}, {XS1}
    s_and_b32 s{sT0}, s{sN}, 1
    s_mul_i32 s{sPART}, s{sT0}, {PART_SLOT}
    s_add_u32 s{sPART}, s{sPART}, s{sBIG}
    s_lshl_b32 s{sT0}, s{sRHO}, 15
    s_add_u32 s98, s{sPART}, s{sT0}
    s_add_u32 s99, s98, 16384
    s_add_u32 s{sTAG}, s{sN}, 128
    s_lshl_b32 s{sTAG}, s{sTAG}, 16
    s_add_u32 s51, s{sPART}, s{sRD}""".split('\n') + [f's_add_u32 s{51+k}, s51, {k*32768}' for k in range(1, 7)]
    def flag():
        A(f"""
        s_add_u32 s{sT0}, s{sN}, 1
        v_mov_b32 v{TMP}, s{sT0}
        s_mov_b64 exec, 1
        buffer_store_dword v{TMP}, off, s[8:11], s{sFLW}
        s_mov_b64 exec, -1
        """)
    A(f's_cmp_lt_u32 s{sRHO}, 14\ns_cbranch_scc1 LM_gemm')
    for t in offs: A(t)
    poll(A, [resld], regs(RESV, 4), TMP, sleep=4)
    flag()
    A('s_barrier\ns_branch LM_red')
    A('LM_xchk:')
    check(A, regs(XR0, 28), TMP)
    A(f's_cbranch_vccz LM_xok\nLM_xgap:\ns_lshl_b32 s{sXL}, s{sLP}, 12\ns_add_u32 s{sXL}, s{sXL}, s{sXA}\nLM_xlight:')
    A(f'buffer_load_dwordx4 {v(XR0,4)}, v{XW_}, s[8:11], s{sXL} offen sc1')
    A(f's_add_u32 s{SCNT}, s{SCNT}, 1\ns_cmp_gt_u32 s{SCNT}, {TIMEOUT}\ns_cbranch_scc1 Lfail')
    check(A, regs(XR0, 4), TMP)
    A('s_cbranch_vccnz LM_xlight')
    for k in range(7): A(ld(k))
    def xproc():
        for k in range(7):
            A(f'ds_write_b128 v{XW_}, {v(XR0+4*k,4)} offset:{L_X + k*4096}')
            for r in range(XR0 + 4 * k, XR0 + 4 + 4 * k):
                A(f'v_dot2_f32_bf16 v40, v{r}, v{ONE2}, {"0" if r == XR0 else "v40"}')
                A(f'v_dot2_f32_bf16 v41, v{r}, v{r}, {"0" if r == XR0 else "v41"}')
        A('v_cmp_u_f32 vcc, v40, v41\ns_cbranch_vccnz LM_xchk')
    xproc()
    A(f's_branch LM_xok\nLM_gemm:\ns_mov_b32 s{SCNT}, 0')
    A(f's_waitcnt vmcnt({1 + st.on})\nv_cmp_eq_u32 vcc, -1, v{XR0+27}\ns_cbranch_vccnz LM_xgap')
    st('xw')
    xproc()
    A(f"""
    LM_xok:
    s_nop 1
    v_permlane16_swap_b32 v40, v41
    v_add_f32 v40, v40, v41
    ds_write_b32 v{STW}, v40 offset:{L_ST}
    """)
    barrier(A)
    st('b1')
    acc = lambda tt, mt: 48 + (mt * 2 + tt) * 4
    NR = 5
    fr = lambda i: 144 + (i % NR) * 4
    rd = lambda i: f'ds_read_b128 {v(fr(i),4)}, v{XR} offset:{L_X + (i % 14)*2048 + (i // 14)*512}'
    A(rd(0)); A(rd(1))
    for k in range(2): A(f'ds_read_b128 {v(64+4*k,4)}, v{STR} offset:{L_ST + k*256}')
    A(rd(2)); A(rd(3))
    A(resld)
    def g1ops(mt):
        ops = []
        for t in range(14):
            i = mt * 14 + t
            for tt in range(2):
                m = f'{MF} {v(acc(tt,mt),4)}, {W1(tt,t)}, {v(fr(i),4)}, {"0" if t == 0 else v(acc(tt,mt),4)}'
                x = [m]
                if tt == 0 and i + 4 < 28: x.append(rd(i + 4))
                ops.append(x)
        return ops
    S, Q = 64, 68
    stat = f"""v_add_f32 v{S}, v{S}, v{S+1}
    v_add_f32 v{Q}, v{Q}, v{Q+1}
    v_add_f32 v{S+2}, v{S+2}, v{S+3}
    v_add_f32 v{Q+2}, v{Q+2}, v{Q+3}
    v_add_f32 v{S}, v{S}, v{S+2}
    v_add_f32 v{Q}, v{Q}, v{Q+2}
    v_mul_f32 v{S}, s60, v{S}
    v_mul_f32 v{Q}, s60, v{Q}
    v_fma_f32 v{Q}, -v{S}, v{S}, v{Q}
    v_max_f32 v{Q}, 0, v{Q}
    v_add_f32 v44, s61, v{Q}
    v_rsq_f32 v44, v44
    v_mul_f32 v{Q}, v{Q}, v44
    v_fma_f32 v{Q}, v{Q}, v44, s61
    v_rsq_f32 v{Q}, v{Q}
    v_mov_b32 v42, s63
    v_mov_b32 v43, s62
    v_mul_f32 v44, v44, v{Q}
    v_mul_f32 v45, -v{S}, v44
    v_mov_b32 v46, v44
    v_mov_b32 v47, v45
    buffer_load_dword v172, v{LANE4}, s[8:11], s{sFLR} offen sc1
    v_permlane32_swap_b32 v44, v46
    v_permlane32_swap_b32 v45, v47""".split('\n')
    def gelu(mt):
        RS, NM = 44 + 2 * mt, 45 + 2 * mt
        el = [(acc(tt, mt) + r, 80 + 8 * mt + tt * 4 + r, tt * 4 + r) for tt in range(2) for r in range(4)]
        pre = [f'v_fma_f32 v{t}, v{NM}, v{CS+k}, v{B1+k}' for x, t, k in el]
        o = []
        for x, t, k in el: o.append(f'v_fma_f32 v{x}, v{x}, v{RS}, v{t}')
        for x, t, k in el: o.append(f'v_mul_f32 v{t}, v{x}, v{x}')
        for x, t, k in el: o.append(f'v_fma_f32 v{t}, v{t}, s62, v42')
        for x, t, k in el: o.append(f'v_mul_f32 v{t}, v{t}, v{x}')
        if mt == 1:
            pe = el[::2]
            o = [f'v_pk_fma_f32 {v(x,2)}, {v(x,2)}, {v(RS,2)}, {v(t,2)} op_sel_hi:[1,0,1]' for x, t, k in pe]
            o += [f'v_pk_mul_f32 {v(t,2)}, {v(x,2)}, {v(x,2)}' for x, t, k in pe]
            o += [f'v_pk_fma_f32 {v(t,2)}, {v(t,2)}, v[42:43], v[42:43] op_sel:[0,1,0] op_sel_hi:[1,1,0]' for x, t, k in pe]
            o += [f'v_pk_mul_f32 {v(t,2)}, {v(t,2)}, {v(x,2)}' for x, t, k in pe]
        ex = [f'v_exp_f32 v{t}, v{t}' for x, t, k in el]
        ad = [f'v_add_f32 v{t}, 1.0, v{t}' for x, t, k in el]
        rc = [f'v_rcp_f32 v{t}, v{t}' for x, t, k in el]
        mu = [f'v_mul_f32 v{x}, v{x}, v{t}' for x, t, k in el]
        for k in range(8):
            o.append(ex[k])
            if k >= 1: o.append(ad[k - 1])
        o.append(rc[0]); o.append(ad[7])
        for k in range(1, 8):
            o.append(rc[k]); o.append(mu[k - 1])
        hb = 108 + 4 * mt
        o.append(f'v_cvt_pk_bf16_f32 v{hb}, v{acc(0,mt)}, v{acc(0,mt)+1}')
        o.append(mu[7])
        for q in range(1, 4): o.append(f'v_cvt_pk_bf16_f32 v{hb+q}, v{acc(0,mt)+2*q}, v{acc(0,mt)+2*q+1}')
        o.append(f'ds_write_b128 v{HW_}, {v(hb,4)} offset:{L_H + mt*1024}')
        return pre, o
    p0, ga = gelu(0); p1, gb = gelu(1)
    va = stat + p0 + p1
    o = list(offs)
    ops = g1ops(0)
    weave(A, ops[:4], o, 2)
    weave(A, ops[4:], va, 2)
    assert not va
    st('g1a')
    ops = g1ops(1)
    weave(A, ops[:2], o, 5); assert not o
    weave(A, ops[2:], ga, OPT['ga'])
    st('g1b')
    take(A, ga, 99)
    take(A, gb, 18)
    A(f'v_cmp_gt_i32 vcc, s{sN}, v172\ns_cbranch_vccnz LM_flw\nLM_flok:')
    barrier(A)
    st('h0')
    hf = lambda ks, mt: (64 if mt == 0 else 176) + ks * 4
    hrd = lambda mt: [f'ds_read_b128 {v(hf(ks,mt),4)}, v{LANE16} offset:{L_H + ks*2048 + mt*1024}' for ks in range(4)]
    for t in hrd(0): A(t)
    take(A, gb, 8)
    ac2 = lambda ct, mt: (116 if mt == 0 else 192) + ct * 4
    g2ops = lambda mt: [f'{MF} {v(ac2(ct,mt),4)}, {v(hf(ks,mt),4)}, {W2(ct,ks)}, {"0" if ks == 0 else v(ac2(ct,mt),4)}' for ks in range(4) for ct in range(7)]
    ops = g2ops(0)
    weave(A, ops[:18], gb, OPT['gb'])
    take(A, gb, 99)
    A(ops[18])
    flag()
    for t in ops[19:23]: A(t)
    st('g2a')
    barrier(A)
    st('h1')
    weave(A, ops[23:], hrd(1), 1)
    def outs(mt):
        o = []
        for r in range(4):
            d = 144 + r * 4
            for p in range(3):
                o.append(f'v_cvt_pk_bf16_f32 v{d+p}, v{ac2(2*p,mt)+r}, v{ac2(2*p+1,mt)+r}')
            o.append(f'v_cvt_pk_bf16_f32 v{d+3}, v{ac2(6,mt)+r}, s{sTAG}')
            o.append(f'buffer_store_dwordx4 {v(d,4)}, v{PST}, s[8:11], s{98+mt} offen offset:{r*1024}')
        return o
    oa = outs(0)
    weave(A, g2ops(1), oa, 1, start=1)
    assert not oa
    st('g2b')
    take(A, outs(1), 99)
    st('red')
    pl = lambda k: f'buffer_load_dwordx4 {v(64+4*k,4)}, v{LANE16}, s[8:11], s{51+k} offen sc1'
    A('LM_red:')
    Y = 96
    for d in range(4):
        A(f'v_lshlrev_b32 v{Y+2*d}, 16, v{RESV+d}\nv_and_b32 v{Y+2*d+1}, 0xffff0000, v{RESV+d}')
    for d in range(4): A(f'v_pk_add_f32 {v(Y+2*d,2)}, {v(Y+2*d,2)}, {v(B2+2*d,2)}')
    A('v_mov_b32 v40, 0\nv_mov_b32 v41, 0')
    for t in xoff(2 * 28672): A(t)
    A(f's_mov_b32 s{SCNT}, 0\ns_cmp_eq_u32 s{sDIR}, 0\ns_cbranch_scc1 LM_pfull\ns_waitcnt vmcnt(0)\ns_cmp_eq_u32 s{sDIR}, 1\ns_cbranch_scc1 LM_pfull\nLM_plight:')
    A(f'buffer_load_dword v64, v{TGA}, s[8:11], s51 offen sc1')
    A(f's_add_u32 s{SCNT}, s{SCNT}, 1\ns_cmp_gt_u32 s{SCNT}, {TIMEOUT}\ns_cbranch_scc1 Lfail')
    A(f'v_cmp_gt_u32 vcc, s{sTAG}, v64\ns_cbranch_vccnz LM_plight\nLM_pfull:')
    for k in range(7): A(pl(k))
    X = 48
    for k in range(7):
        for ct in range(7):
            A(f'v_dot2_f32_bf16 v{X+ct}, v{64+4*k+(ct>>1)}, v{SELHI if ct & 1 else SELLO}, {"0" if k == 0 else f"v{X+ct}"}')
    A(f"""
    v_min3_u32 v56, v67, v71, v75
    v_min3_u32 v56, v56, v79, v83
    v_min3_u32 v56, v56, v87, v91
    v_cmp_gt_u32 vcc, s{sTAG}, v56
    s_cbranch_vccnz LM_plight
    """)
    st('pok')
    for p in range(3): A(f'ds_write2_b32 v{RBW}, v{X+2*p}, v{X+2*p+1} offset0:{32*p} offset1:{32*p+16}')
    A(f'ds_write_b32 v{RBW}, v{X+6} offset:384')
    barrier(A)
    st('rb')
    A(f's_mov_b64 exec, s[{sM56}:{sM56+1}]')
    for q in range(4): A(f'ds_read_b128 {v(104+4*q,4)}, v{RBR} offset:{(q>>1)*3584 + (q&1)*16}')
    for q in range(4):
        for p in range(2): A(f'v_pk_add_f32 {v(Y+4*(q&1)+2*p,2)}, {v(Y+4*(q&1)+2*p,2)}, {v(104+4*q+2*p,2)}')
    A(f's_cmp_eq_u32 s{sPH}, 0\ns_cbranch_scc0 LM_ln')
    for d in range(4): A(f'v_cvt_pk_bf16_f32 v{104+d}, v{Y+2*d}, v{Y+2*d+1}')
    pf = '\n'.join(['s_mov_b64 exec, -1'] + [ld(k) for k in range(7)])
    A(f"""
    s_cmp_eq_u32 s{sLAYER}, 0
    s_cbranch_scc1 LM_xb
    buffer_store_dwordx4 v[104:107], v{LANE16}, s[12:15], s{sOUT} offen
    LM_idle:
    {pf}
    s_waitcnt vmcnt(0)
    s_branch LM_next
    LM_xb:
    {pf}
    s_mov_b64 exec, s[{sM56}:{sM56+1}]
    s_waitcnt vmcnt(0)
    buffer_store_dwordx4 v[104:107], v{LANE16}, s[12:15], s{sOUT} offen sc1
    s_branch LM_next
    LM_ln:
    s_cmp_eq_u32 s{sLAYER}, 0
    s_cbranch_scc0 LM_idle
    v_pk_add_f32 v[104:105], {v(Y,2)}, {v(Y+2,2)}
    v_pk_mul_f32 v[106:107], {v(Y,2)}, {v(Y,2)}
    v_pk_add_f32 v[104:105], v[104:105], {v(Y+4,2)}
    v_pk_fma_f32 v[106:107], {v(Y+2,2)}, {v(Y+2,2)}, v[106:107]
    v_pk_add_f32 v[104:105], v[104:105], {v(Y+6,2)}
    v_pk_fma_f32 v[106:107], {v(Y+4,2)}, {v(Y+4,2)}, v[106:107]
    v_add_f32 v40, v104, v105
    v_pk_fma_f32 v[106:107], {v(Y+6,2)}, {v(Y+6,2)}, v[106:107]
    v_add_f32 v41, v106, v107
    s_mov_b64 exec, -1
    {ld(0)}
    v_permlane16_swap_b32 v40, v41
    v_add_f32 v40, v40, v41
    v_mov_b32 v41, v40
    {ld(1)}
    v_permlane32_swap_b32 v40, v41
    v_add_f32 v40, v40, v41
    """)
    for i, k in enumerate((8, 4, 2, 1)): A(ld(2 + i) + f'\nv_add_f32_dpp v40, v40, v40 row_ror:{k} row_mask:0xf bank_mask:0xf')
    A(f"""
    v_mul_f32 v40, s60, v40
    v_readlane_b32 s{sT0}, v40, 0
    v_readlane_b32 s{sT1}, v40, 16
    {ld(6)}
    v_mov_b32 v42, s{sT0}
    v_fma_f32 v40, -v42, v42, s{sT1}
    v_max_f32 v40, 0, v40
    v_add_f32 v40, s61, v40
    v_rsq_f32 v40, v40
    """)
    for d in range(4): A(f'v_pk_add_f32 {v(Y+2*d,2)}, {v(Y+2*d,2)}, v[42:43] op_sel_hi:[1,0] neg_lo:[0,1] neg_hi:[0,1]')
    for d in range(4): A(f'v_pk_mul_f32 {v(Y+2*d,2)}, {v(Y+2*d,2)}, v[40:41] op_sel_hi:[1,0]')
    for d in range(4): A(f'v_cvt_pk_bf16_f32 v{104+d}, v{Y+2*d}, v{Y+2*d+1}')
    A(f"""
    s_mov_b64 exec, s[{sM56}:{sM56+1}]
    buffer_store_dwordx4 v[104:107], v{LANE16}, s[8:11], s{sXSO} offen sc1
    LM_next:
    s_mov_b64 exec, -1
    """)
    st('end')
    st.flush(TMP, LANE4)
    A(f"""
    s_add_u32 s{sSEG}, s{sSEG}, 2
    s_add_u32 s{sN}, s{sN}, 1
    s_add_u32 s{sXA}, s{sXA}, {2*28672}
    s_cmp_lt_u32 s{sSEG}, {3 if 'one' in opts else 64}
    s_cbranch_scc1 LM_job
    s_branch Ldone
    """)
    A('LM_flw:')
    poll(A, [f'buffer_load_dword v172, v{LANE4}, s[8:11], s{sFLR} offen sc1'], None, None, cmp=f'v_cmp_gt_i32 vcc, s{sN}, v172')
    A('s_branch LM_flok')
```

```python
from asmlib import *
from layout import *
from common import *
import math, struct

MF = 'v_mfma_f32_16x16x32_bf16'
WSZ = 448 * 8192
sW, sXCC, sRANK = 20, 21, 22
pWQ, pWK, pWV, pWO, pM0 = 92, 94, 96, 98, 100
TA = 28
NT = {'b': ' nt', 'l': ' nt', 'q': ' nt', 'k': '', 'm': ''}

def fbits(x): return '0x%08x' % struct.unpack('<I', struct.pack('<f', x))[0]

def srd(A, d, base, nbytes):
    A(f's_mov_b32 s{d}, s{base}\ns_mov_b32 s{d+1}, s{base+1}\ns_mov_b32 s{d+2}, {nbytes}\ns_mov_b32 s{d+3}, 0x20000')

def arrive_issue(A, off, t, drain=True):
    L = A.newlabel('arr')
    if drain: A('s_waitcnt vmcnt(0)\ns_barrier')
    A(f"""
    v_mov_b32 v{t}, {off}
    v_mov_b32 v{t+1}, 1
    v_mov_b32 v{t+2}, 0
    s_cmp_lg_u32 s{sW}, 0
    s_cbranch_scc1 {L}
    s_mov_b64 exec, 1
    global_atomic_add v{t+2}, v{t}, v{t+1}, s[46:47] sc0
    s_mov_b64 exec, -1
    {L}:
    """)
def arrive_finish(A, n, t):
    L = A.newlabel('arf')
    A(f"""
    v_cmp_eq_u32 vcc, {n-1}, v{t+2}
    s_cbranch_vccz {L}
    s_mov_b64 exec, 1
    global_store_dword v{t}, v{t+1}, s[46:47] offset:128 sc1
    s_mov_b64 exec, -1
    {L}:
    """)
def arrive(A, off, n):
    arrive_issue(A, off, 2); arrive_finish(A, n, 2)

def await_(A, offs, t0):
    L = A.newlabel('aw'); D = A.newlabel('awok')
    for k, off in enumerate(offs): A(f'v_mov_b32 v{t0+2*k}, {off}')
    A(f's_mov_b32 s{SCNT}, 0\n{L}:')
    for k in range(len(offs)): A(f'global_load_dword v{t0+2*k+1}, v{t0+2*k}, s[46:47] offset:128 sc1')
    A(f's_add_u32 s{SCNT}, s{SCNT}, 1\ns_cmp_gt_u32 s{SCNT}, {TIMEOUT}\ns_cbranch_scc1 Lfail')
    for k in range(1, len(offs)): A(f'v_and_b32 v{t0+1}, v{t0+1}, v{t0+2*k+1}')
    A(f"""
    v_cmp_eq_u32 vcc, 0, v{t0+1}
    s_cbranch_vccz {D}
    s_sleep 2
    s_branch {L}
    {D}:
    """)

def panel_pattern(A, d):
    A(f"""
    v_lshrrev_b32 v112, 5, v0
    v_and_b32 v{d}, 31, v0
    v_xor_b32 v{d}, v{d}, v112
    v_lshlrev_b32 v{d}, 4, v{d}
    v_lshl_add_u32 v{d}, v112, 13, v{d}
    """)
def panel_read_bases(A, d):
    A(f"""
    v_and_b32 v112, 15, v0
    v_lshrrev_b32 v113, 4, v0
    v_xor_b32 v113, v112, v113
    v_lshlrev_b32 v113, 4, v113
    v_lshrrev_b32 v114, 2, v112
    v_lshlrev_b32 v114, 3, v114
    v_and_b32 v112, 3, v112
    v_add_u32 v114, v114, v112
    v_lshl_add_u32 v{d}, v114, 9, v113
    v_xor_b32 v{d+1}, 64, v{d}
    v_xor_b32 v{d+2}, 128, v{d}
    v_xor_b32 v{d+3}, 192, v{d}
    """)
def panel_dma(A, pat, tmp, srdreg, so, nt):
    o = []
    for i in range(16):
        xc = ((2 * (i & 1)) | ((i >> 2) << 2)) * 16
        o.append(f'v_xor_b32 v{tmp}, {xc}, v{pat}\nbuffer_load_dwordx4 v{tmp}, s[{srdreg}:{srdreg+3}], s{so} offen{nt} lds')
        if i < 15: o.append(f's_add_u32 s{so}, s{so}, 16384\ns_add_u32 m0, m0, 1024')
    return o

def btask(A):
    srd(A, 12, pWV, WSZ); srd(A, 16, pWO, WSZ)
    A(f"""
    s_mul_i32 s48, s{sRANK}, 37
    s_lshr_b32 s48, s48, 8
    s_mul_i32 s49, s48, 7
    s_sub_u32 s49, s{sRANK}, s49    ; b
    s_and_b32 s50, s{sXCC}, 3
    s_lshl_b32 s50, s50, 2
    s_add_u32 s50, s50, s48         ; h
    v_lshrrev_b32 v2, 3, v0
    v_mul_u32_u24 v2, 896, v2
    v_and_b32 v4, 7, v0
    v_bfe_u32 v5, v0, 4, 1
    v_lshlrev_b32 v5, 1, v5
    v_xor_b32 v4, v4, v5
    v_xor_b32 v5, 4, v4
    v_lshl_add_u32 v4, v4, 4, v2
    v_lshl_add_u32 v5, v5, 4, v2
    s_mul_i32 s51, s50, 229376
    s_mul_i32 s52, s{sW}, {64*896}
    s_add_u32 s51, s51, s52
    s_lshl_b32 s52, s49, 7
    s_add_u32 s51, s51, s52
    s_lshl_b32 s52, s{sW}, 13
    s_mov_b32 m0, s52
    """)
    for k in range(8):
        A(f'buffer_load_dwordx4 v{4 + (k & 1)}, s[16:19], s51 offen{NT["b"]} lds')
        if k < 7: A(f's_add_u32 s51, s51, {8*896}\ns_add_u32 m0, m0, 1024')
    panel_pattern(A, 3)
    A(f"""
    s_lshl_b32 s53, s49, 6
    s_add_u32 s53, s53, s50
    s_mul_i32 s53, s53, 14336
    s_add_u32 s53, s53, {WB}
    s_lshl_b32 s57, s50, 9          ; h*512
    s_lshl_b32 s60, s49, 1
    s_add_u32 s60, s60, s{sW}
    s_add_u32 s61, s60, 4
    s_add_u32 s62, s60, 8
    s_add_u32 s63, s60, 12
    s_lshl_b32 s55, s{sW}, 15
    s_add_u32 s55, s55, 32768
    """)
    for c in range(4): A(f's_sub_u32 s52, s{60+c}, 14\ns_cselect_b32 s{60+c}, s{60+c}, s52')
    A(f's_cmp_ge_u32 s{sW}, 2\ns_cselect_b32 s63, 14, s63')
    def panel(c):
        return [f's_add_u32 m0, s55, {(c & 1)*16384}\ns_lshl_b32 s51, s{60+c}, 18\ns_add_u32 s51, s51, s57'] + panel_dma(A, 3, 6, 12, 51, NT['b'])
    take(A, panel(0), 99)
    panel_read_bases(A, 12)
    A("""
    v_add_u32 v12, s55, v12
    v_add_u32 v13, s55, v13
    v_add_u32 v14, s55, v14
    v_add_u32 v15, s55, v15
    v_lshrrev_b32 v4, 4, v0
    v_bfe_u32 v5, v0, 2, 2
    v_lshl_add_u32 v7, v4, 3, v5
    v_lshlrev_b32 v7, 7, v7
    v_and_b32 v2, 3, v0
    v_lshl_add_u32 v7, v2, 3, v7
    v_and_b32 v4, 1, v4
    v_lshrrev_b32 v5, 1, v5
    v_lshl_add_u32 v4, v4, 1, v5
    v_lshl_add_u32 v16, v4, 5, v7
    v_xor_b32 v17, 32, v16
    v_xor_b32 v18, 64, v16
    v_xor_b32 v19, 96, v16
    s_waitcnt vmcnt(16)
    s_barrier
    """)
    once(A, 'col')
    C = lambda tl, es: 64 + (tl * 8 + es) * 4
    p1 = panel(1)
    for es in range(8):
        for tl in range(4):
            for z in range(2):
                A(f'ds_read_b64_tr_b16 {v(C(tl,es)+2*z,2)}, v{16+tl} offset:{es*4096 + z*512}')
            take(A, p1, 1)
    assert not p1
    acc = lambda z, tl: 32 + (z * 4 + tl) * 4
    waits = [16, 20, 24, 8]
    for ch in range(4):
        slot = ch & 1
        if ch == 3: A(f's_cmp_ge_u32 s{sW}, 2\ns_cbranch_scc1 Lbt_end')
        A(f's_waitcnt vmcnt({waits[ch]})')
        once(A, f'c{ch}')
        F = lambda es, z: 192 + (es * 2 + z) * 4
        for es in range(8):
            for z in range(2):
                A(f'ds_read_b128 {v(F(es,z),4)}, v{12 + (es & 3)} offset:{slot*16384 + z*2048 + (es>>2)*256}')
        ops = [f'{MF} {v(acc(z,tl),4)}, {v(F(es,z),4)}, {v(C(tl,es),4)}, {"0" if es == 0 else v(acc(z,tl),4)}' for es in range(8) for z in range(2) for tl in range(4)]
        if ch < 2:
            weave(A, ops[:16], [], 0)
            A('s_waitcnt lgkmcnt(0)')
            pn = panel(ch + 2)
            weave(A, ops[16:], pn, 0.67); take(A, pn, 99)
        else: weave(A, ops, [], 0)
        A(f's_lshl_b32 s56, s{60+ch}, 10\ns_add_u32 s56, s56, s53')
        for tl in range(4):
            o = 20 + (tl & 1) * 4
            for z in range(2):
                for p in range(2):
                    A(f'v_cvt_pk_bf16_f32 v{o+2*z+p}, v{acc(z,tl)+2*p}, v{acc(z,tl)+2*p+1}')
            A(f'buffer_store_dwordx4 {v(o,4)}, v1, s[8:11], s56 offen sc1')
            if tl < 3: A(f's_add_u32 s56, s56, {16*14336}')
    once(A, 'c4')
    A(f'Lbt_end:\ns_and_b32 s48, s{sXCC}, 3\ns_lshl_b32 s48, s48, 5\ns_add_u32 s48, s48, {D_CB}')
    arrive(A, 's48', 28)

def team_clear(A):
    A(f"""
    s_lshl_b32 s48, s{sRANK}, 12
    s_lshl_b32 s49, s{sW}, 10
    s_add_u32 s48, s48, s49
    s_add_u32 s48, s48, s30
    s_lshl_b32 s35, s{sXCC}, 4
    s_add_u32 s35, s35, {D_CT}
    """)
    for r in range(8, 12): A(f'v_mov_b32 v{r}, -1')
    for k in range(TCLR_N):
        A('buffer_store_dwordx4 v[8:11], v1, s[8:11], s48 offen')
        if k + 1 < TCLR_N: A(f's_add_u32 s48, s48, {32*4096}')

def first_clear(A):
    assert AHEAD == 4
    for r in range(8, 12): A(f'v_mov_b32 v{r}, -1')
    A(f"""
    s_lshl_b32 s48, s{sRANK}, 12
    s_lshl_b32 s49, s{sW}, 10
    s_add_u32 s48, s48, s49
    s_add_u32 s49, s48, 16384
    s_cmp_lt_u32 s{sRANK}, 12
    s_cselect_b32 s49, s49, 0x40000000
    buffer_store_dwordx4 v[8:11], v1, s[8:11], s49 offen sc1
    s_add_u32 s48, s48, {XA}
    s_cmp_lt_u32 s{sRANK}, 28
    s_cselect_b32 s48, s48, 0x40000000
    """)
    for k in range(4):
        A('buffer_store_dwordx4 v[8:11], v1, s[8:11], s48 offen sc1')
        if k < 3: A(f's_add_u32 s48, s48, {XBYTES}')

def red8(A, op, r):
    for m in ('quad_perm:[1,0,3,2]', 'quad_perm:[2,3,0,1]', 'row_half_mirror'):
        A(f'{op}_dpp {v(r)}, {v(r)}, {v(r)} {m} row_mask:0xf bank_mask:0xf')

def lntask(A):
    srd(A, 12, 4, XBYTES); srd(A, 16, pM0, 7168)
    A(f"""
    s_lshl_b32 s51, s{sRANK}, 2
    s_add_u32 s51, s51, s{sW}
    s_mul_i32 s51, s51, {16*896}
    v_lshrrev_b32 v2, 3, v0
    v_mul_u32_u24 v2, 896, v2
    v_and_b32 v3, 7, v0
    v_lshl_add_u32 v3, v3, 4, v2
    s_add_u32 s52, s51, {8*896}
    """)
    for grp in range(2):
        for tp in range(7):
            A(f'buffer_load_dwordx4 {v(16 + grp*28 + tp*4, 4)}, v3, s[12:15], s{51+grp} offen offset:{tp*128}{NT["l"]}')
    A(f's_mov_b32 s53, 0xffff0000\ns_mov_b32 s54, {fbits(1/448)}\ns_mov_b32 s55, {fbits(1e-5)}')
    for grp in range(2):
        src = 16 + grp * 28; X = 80
        for d in range(28):
            A(f'v_lshlrev_b32 v{X+2*d}, 16, v{src+d}\nv_and_b32 v{X+2*d+1}, s53, v{src+d}')
        A(f'v_pk_add_f32 v[4:5], {v(X,2)}, {v(X+2,2)}')
        for d in range(2, 28): A(f'v_pk_add_f32 v[4:5], v[4:5], {v(X+2*d,2)}')
        A('v_add_f32 v4, v4, v5')
        red8(A, 'v_add_f32', 4)
        A('v_mul_f32 v4, s54, v4')
        for d in range(28): A(f'v_pk_add_f32 {v(X+2*d,2)}, {v(X+2*d,2)}, v[4:5] op_sel_hi:[1,0] neg_lo:[0,1] neg_hi:[0,1]')
        A(f'v_pk_mul_f32 v[12:13], {v(X,2)}, {v(X,2)}')
        for d in range(1, 28): A(f'v_pk_fma_f32 v[12:13], {v(X+2*d,2)}, {v(X+2*d,2)}, v[12:13]')
        A('v_add_f32 v12, v12, v13')
        red8(A, 'v_add_f32', 12)
        A('v_mov_b32 v13, s55\nv_fmac_f32 v13, s54, v12\nv_rsq_f32 v12, v13')
        for d in range(28):
            A(f'v_pk_mul_f32 {v(X+2*d,2)}, {v(X+2*d,2)}, v[12:13] op_sel_hi:[1,0]')
            A(f'v_cvt_pk_bf16_f32 v{src+d}, v{X+2*d}, v{X+2*d+1}')
        A(f's_add_u32 s56, s{51+grp}, {XS0}')
        for tp in range(7):
            A(f'buffer_store_dwordx4 {v(src + tp*4, 4)}, v3, s[8:11], s56 offen offset:{tp*128} sc1')
    A(f"""
    """)
    once(A, 'a0')
    A(f"""
    s_cmp_lg_u32 s{sRANK}, 0
    s_cbranch_scc1 Lln_home
    v_bfe_u32 v2, v0, 2, 3
    v_mul_u32_u24 v2, 224, v2
    v_and_b32 v4, 3, v0
    v_lshl_add_u32 v2, v4, 1, v2
    v_lshrrev_b32 v4, 5, v0
    v_add_u32 v2, v2, v4
    v_lshlrev_b32 v2, 2, v2
    s_lshl_b32 s51, s{sW}, 5
    s_lshl_b32 s52, s{sW}, 8
    v_lshl_add_u32 v4, v0, 2, s52
    s_mov_b32 s52, 4096
    s_mov_b32 s53, 8192
    s_mov_b32 s54, 12288
    """)
    for k in range(7):
        A(f'buffer_load_dword v{80+k}, v2, s[16:19], s51 offen offset:{k*128}')
    for k in range(7):
        so = ('0', 's52')[k >> 2]; so2 = ('s53', 's54')[k >> 2]
        A(f'buffer_store_dword v{80+k}, v4, s[8:11], {so} offen offset:{(k&3)*1024} sc1')
        A(f'buffer_store_dword v{80+k}, v4, s[8:11], {so2} offen offset:{(k&3)*1024} sc1')
    A(f"""
    Lln_home:
    s_and_b32 s51, s{sRANK}, 14
    s_cmp_lg_u32 s51, 14
    s_cbranch_scc1 Lln_novote
    s_and_b32 s51, s{sW}, 1
    s_lshl_b32 s51, s51, 13
    s_lshr_b32 s52, s{sW}, 1
    s_lshl_b32 s52, s52, 9
    s_add_u32 s51, s51, s52
    s_add_u32 s51, s51, 7168
    s_lshl_b32 s52, s{sRANK}, 14
    s_add_u32 s51, s51, s52
    s_mov_b32 s52, -1
    v_lshlrev_b32 v2, 2, v0
    """)
    for k in range(3):
        for ph in range(2):
            L = A.newlabel('hv')
            A(f"""
            s_waitcnt vmcnt(0)
            s_barrier
            s_bitcmp{ph}_b32 s{sW}, 0
            s_cbranch_scc0 {L}
            s_memtime s[54:55]
            s_waitcnt lgkmcnt(0)
            buffer_store_dword v2, v2, s[8:11], s51 offen sc1
            s_waitcnt vmcnt(0)
            s_memtime s[56:57]
            s_waitcnt lgkmcnt(0)
            s_sub_u32 s53, s56, s54
            s_min_u32 s52, s52, s53
            {L}:
            """)
    A(f"""
    s_lshl_b32 s53, s{sW}, 2
    v_mov_b32 v4, s53
    v_mov_b32 v5, s52
    ds_write_b32 v4, v5
    v_mov_b32 v4, 0
    s_waitcnt lgkmcnt(0)
    s_barrier
    ds_read_b128 v[8:11], v4
    s_lshr_b32 s54, s{sRANK}, 4
    s_lshl_b32 s54, s54, 1
    s_and_b32 s55, s{sRANK}, 1
    s_add_u32 s54, s54, s55
    s_lshl_b32 s54, s54, 2
    s_add_u32 s54, s54, {PAR}
    v_min_u32 v8, v8, v10
    v_min_u32 v9, v9, v11
    v_cmp_lt_u32 vcc, v9, v8
    v_cndmask_b32 v12, 0, 1, vcc
    buffer_store_dword v12, v4, s[8:11], s54 offen sc1
    Lln_novote:
    """)
    once(A, 'h1')
    first_clear(A)
    arrive(A, D_CA, 32)

def acomp(A, X, sH, sB, wloads, wb_await, bq):
    NS = 6
    srd(A, 12, pWK, WSZ); srd(A, 16, pWQ, WSZ)
    panel_pattern(A, 117)
    A(f"""
    s_lshl_b32 s48, s{sW}, 6
    v_xor_b32 v2, s48, v117
    v_xor_b32 v3, 32, v2
    s_lshl_b32 s49, s{sH}, 9
    s_lshl_b32 s50, s{sW}, 16
    s_add_u32 s50, s50, s49         ; 8w*8192 + h*512
    s_lshl_b32 s51, s{sW}, 12       ; 4w*1024
    s_lshl_b32 s52, s{sB}, 19
    s_add_u32 s52, s52, s49         ; 64b*8192 + h*512
    s_add_u32 s53, s{sW}, {NS}
    s_lshl_b32 s53, s53, 14
    s_mov_b32 s54, {fbits(256 ** -0.5 * math.log2(math.e))}
    """)
    fifo = []
    def put(x):
        if isinstance(x, tuple):
            fifo.append(x[:2]); A(x[2])
        else: A(x)
    def col(zz):
        A(f's_add_u32 s55, s52, {zz*32*8192}\ns_mov_b32 m0, s53')
        take(A, panel_dma(A, 117, 112, 16, 55, NT['q']), 99)
        fifo.extend([('c', zz)] * 16)
    def dma(p):
        o = [f's_add_u32 s55, s50, {p*32*8192}\ns_add_u32 m0, s51, {(p % NS)*16384}']
        for k in range(4):
            o.append(('p', p, f'buffer_load_dwordx4 v{2 + (k & 1)}, s[12:15], s55 offen{NT["k"]} lds'))
            if k < 3: o.append('s_add_u32 s55, s55, 16384\ns_add_u32 m0, m0, 1024')
        return o
    def landed(tag):
        n = 0
        for t in reversed(fifo):
            if t == tag: break
            n += 1
        A(f's_waitcnt vmcnt({min(n, 63)})')
    C = lambda tl, es: (48 if tl < 2 else 120) + ((tl & 1) * 8 + es) * 4
    def colread(zz):
        landed(('c', zz))
        for es in range(8):
            for tt in range(2):
                A(f'ds_read_b128 {v(C(2*zz+tt,es),4)}, v{12 + (es & 3)} offset:{tt*2048 + (es>>2)*256}')
        A('s_waitcnt lgkmcnt(0)')
    if not X: col(0)
    for p in range(2):
        for x in dma(p): put(x)
    if not X:
        panel_read_bases(A, 4)
        for k in range(4): A(f'v_add_u32 v{8+k}, 0x10000, v{4+k}\nv_add_u32 v{12+k}, s53, v{4+k}')
        colread(0)
        col(1)
    for p in range(2, NS - 1):
        for x in dma(p): put(x)
    landed(('p', 0))
    A('s_barrier')
    once(A, 'a0')
    NFR = 6
    def rd(i):
        q, j = divmod(i, 16); es, z = j >> 1, j & 1; sl = (q >> 1) % NS
        return f'ds_read_b128 {v(232 + (i % NFR)*4, 4)}, v{(4 if sl < 4 else 8) + (es & 3)} offset:{(sl & 3)*16384 + z*2048 + (es>>2)*256}'
    acc = lambda q, z, tt: 16 + (q & 1) * 16 + (tt * 2 + z) * 4
    def epi(q):
        t, zz = divmod(q, 2); o = []
        for tt in range(2):
            b = acc(q, 0, tt)
            o += [f'v_mul_f32 v{b+r}, s54, v{b+r}' for r in range(8)]
            o += [f'v_cvt_pk_bf16_f32 v{b+2*k}, v{b+2*k}, v{b+2*k+1}' for k in range(4)]
            o += [f'v_accvgpr_write_b32 a{(2*zz+tt)*56 + t*4 + k}, v{b+2*k}' for k in range(4)]
        return o
    if not X:
        for i in range(NFR - 1): A(rd(i))
    wl = list(wloads); per = -(-len(wl) // (28 - bq))
    for q in range(28):
        p, zz = divmod(q, 2)
        side = []
        if q == 1 and not X: colread(1)
        if q == bq:
            once(A, 'h1'); arrive_issue(A, 's35', 112, False); wb_await(); arrive_finish(A, 32, 112); fifo.clear(); once(A, 'bw')
        if q >= bq: side = [('w', 0, wl.pop(0)) for _ in range(min(per, len(wl)))]
        nxt = []
        if zz == 1 and p + 1 < 14:
            if ('p', p + 1) in fifo: landed(('p', p + 1))
            A('s_barrier')
            if p + NS - 1 < 14: nxt = dma(p + NS - 1)
        side = nxt + side
        if X:
            for x in side: put(x)
            continue
        va = epi(q - 1) if q else []
        for j in range(16):
            i = q * 16 + j; es, z = j >> 1, j & 1
            for tt in range(2):
                D = v(acc(q, z, tt), 4)
                A(f'{MF} {D}, {v(232 + (i % NFR)*4, 4)}, {v(C(2*zz+tt,es),4)}, {"0" if es == 0 else D}')
                if tt == 0 and i + NFR - 1 < 28 * 16: A(rd(i + NFR - 1))
                if tt == 1 and side and (len(side) >= 16 - j or j & 1): put(side.pop(0))
                if j >= 1: take(A, va, 1 if j < 15 else 3)
        assert not va and not side
    if not X: take(A, epi(27), 99)
    A('s_barrier')
```

```python
import sys
sys.path.insert(0, 'gen')
from asmlib import *
from layout import *

NAME = 'interleave_layers__memory_aug_recurrent_mem_tr__mixer_channel_mlp__prompt'
ref = open(f'cdna_kernels/{NAME}.s.ref').read().split('\n')
head = [l for l in ref if l.startswith(';   offset') or l.startswith('; Kernarg')]

def kd(name, vg, acc, sg=102):
    return f""".amdhsa_kernel {name}
  .amdhsa_next_free_vgpr {vg}
  .amdhsa_next_free_sgpr {sg}
  .amdhsa_accum_offset {acc}
  .amdhsa_group_segment_fixed_size 0
  .amdhsa_kernarg_size 120
  .amdhsa_user_sgpr_count 2
  .amdhsa_user_sgpr_kernarg_segment_ptr 1
  .amdhsa_system_sgpr_workgroup_id_x 1
  .amdhsa_float_denorm_mode_32 3
.end_amdhsa_kernel"""

def build(out, name, lds, gen):
    txt = list(head)
    txt.append(f'; @launch grid=(256,1,1) block=(256,1,1) lds={lds}')
    txt.append('.amdgcn_target "amdgcn-amd-amdhsa--gfx950"\n.text')
    A = Asm(); gen(A)
    txt.append(f'.globl {name}\n.p2align 8\n.type {name},@function\n{name}:')
    txt.append(A.finish())
    txt.append('.section .rodata,"a"')
    txt.append('.p2align 6\n' + kd(name, 512, 256))
    open(out, 'w').write('\n'.join(txt) + '\n')

if __name__ == '__main__':
    import mainK
    opts = sys.argv[3:]
    build(sys.argv[2], NAME + '_kernel', mainK.LDS_BYTES, lambda A: mainK.gen_main(A, opts))
```

```python
from asmlib import *
from layout import *
from pro import srd, fbits
import mlp, attn, pro, common
from common import once

LDS_BYTES = 163840
TIMEOUT = 1 << 17

def gen_main(A, opts):
    for o in opts:
        if o.startswith('once='): common.ONCE[:] = o[5:].split(',')
        if o.startswith('nt='):
            for k in pro.NT: pro.NT[k] = ' nt' if k in o[3:] else ''
    dbg = bool(common.ONCE)
    A(f"""
    Lstart:
    s_cmp_ge_u32 s2, 256
    s_cbranch_scc1 Lend
    s_load_dwordx2 s[4:5], s[0:1], 0
    s_load_dwordx2 s[6:7], s[0:1], 112
    s_load_dwordx8 s[36:43], s[0:1], 64
    s_load_dwordx4 s[44:47], s[0:1], 96
    s_load_dwordx8 s[92:99], s[0:1], 16
    s_load_dwordx2 s[100:101], s[0:1], 8
    {'s_memrealtime s[88:89]' if dbg else ''}
    s_getreg_b32 s21, hwreg(HW_REG_XCC_ID)
    s_and_b32 s21, s21, 7
    v_lshrrev_b32 v2, 6, v0
    v_and_b32 v0, 63, v0
    v_readfirstlane_b32 s20, v2
    v_mov_b32 v3, 0
    """)
    if 'nocp' not in opts:
        A(f"""
        s_getpc_b64 s[12:13]
        s_and_b32 s12, s12, 0xffffff00
        s_mov_b32 s14, Lend-Lstart
        s_mov_b32 s15, 0x20000
        s_lshr_b32 s16, s2, 3
        s_and_b32 s16, s16, 3
        s_lshl_b32 s16, s16, 2
        s_add_u32 s16, s16, s20
        s_lshl_b32 s16, s16, 13
        v_lshlrev_b32 v8, 7, v0
        buffer_load_dword v119, v8, s[12:15], s16 offen
        """)
    A(f"""
    s_waitcnt lgkmcnt(0)
    s_cmp_lg_u32 s20, 0
    s_cbranch_scc1 Lnorank
    s_lshl_b32 s22, s21, 5
    v_mov_b32 v4, s22
    v_mov_b32 v5, 1
    s_mov_b64 exec, 1
    global_atomic_add v6, v4, v5, s[46:47] sc0
    ds_write_b32 v3, v6
    s_waitcnt lgkmcnt(0)
    s_mov_b64 exec, -1
    Lnorank:
    s_barrier
    ds_read_b32 v6, v3
    """)
    srd(A, 8, 6, WS_USED)
    A(f"""
    s_lshr_b32 s23, s21, 2
    s_and_b32 s24, s21, 3
    v_lshlrev_b32 v1, 4, v0
    s_mul_i32 s30, s21, {TEAM_STRIDE}
    s_add_u32 s30, s30, {TEAMB}
    s_mul_i32 s31, s21, {BIG_STRIDE}
    s_add_u32 s31, s31, {BIG}
    v_readfirstlane_b32 s22, v6
    s_barrier
    s_cmp_ge_u32 s22, 32
    s_cbranch_scc1 Lend
    """)
    pro.team_clear(A)
    A(f"""
    s_cmp_lt_u32 s21, 3
    s_cbranch_scc1 Lattn
    s_cmp_eq_u32 s21, 3
    s_cbranch_scc1 Lln
    s_cmp_ge_u32 s22, 28
    s_cbranch_scc1 Lnobt
    """)
    pro.btask(A)
    once(A, 'bt')
    A('Lnobt:\ns_cmp_lg_u32 s21, 7\ns_cbranch_scc1 Lattn')
    A('s_branch Lmlp\nLln:')
    pro.lntask(A)
    once(A, 'clr')
    A('s_branch Lmlp\nLattn:')
    attn.gen_attn(A, opts)
    A('Lmlp:')
    mlp.gen_mlp(A, opts)
    A("""
    Lfail:
    s_mov_b64 exec, 1
    v_mov_b32 v2, 20
    v_mov_b32 v3, 1
    global_atomic_add v2, v3, s[46:47]
    s_endpgm
    Ldone:
    """)
    if dbg:
        once(A, 'end')
        A(f"""
        s_mov_b64 exec, -1
        s_lshl_b32 s58, s21, 5
        s_add_u32 s58, s58, s22
        s_lshl_b32 s58, s58, 2
        s_add_u32 s58, s58, s20
        s_lshl_b32 s58, s58, 6
        s_add_u32 s58, s58, {DBG}
        v_lshrrev_b32 v3, 2, v1
        """)
        for k in range(9): A(f'v_writelane_b32 v2, s{72+2*k}, {k}')
        A('s_mov_b64 exec, 0xffff\nbuffer_store_dword v2, v3, s[8:11], s58 offen')
    A('Lend:\ns_endpgm')
```

```python
from asmlib import *
from layout import *
from pro import srd, fbits
import mlp, attn, pro, common
from common import once

LDS_BYTES = 163840
TIMEOUT = 1 << 17

def gen_main(A, opts):
    for o in opts:
        if o.startswith('once='): common.ONCE[:] = o[5:].split(',')
        if o.startswith('nt='):
            for k in pro.NT: pro.NT[k] = ' nt' if k in o[3:] else ''
    dbg = bool(common.ONCE)
    A(f"""
    Lstart:
    s_cmp_ge_u32 s2, 256
    s_cbranch_scc1 Lend
    s_load_dwordx2 s[4:5], s[0:1], 0
    s_load_dwordx2 s[6:7], s[0:1], 112
    s_load_dwordx8 s[36:43], s[0:1], 64
    s_load_dwordx4 s[44:47], s[0:1], 96
    s_load_dwordx8 s[92:99], s[0:1], 16
    s_load_dwordx2 s[100:101], s[0:1], 8
    {'s_memrealtime s[88:89]' if dbg else ''}
    s_getreg_b32 s21, hwreg(HW_REG_XCC_ID)
    s_and_b32 s21, s21, 7
    v_lshrrev_b32 v2, 6, v0
    v_and_b32 v0, 63, v0
    v_readfirstlane_b32 s20, v2
    v_mov_b32 v3, 0
    """)
    if 'nocp' not in opts:
        A(f"""
        s_getpc_b64 s[12:13]
        s_and_b32 s12, s12, 0xffffff00
        s_mov_b32 s14, Lend-Lstart
        s_mov_b32 s15, 0x20000
        s_lshr_b32 s16, s2, 3
        s_and_b32 s16, s16, 3
        s_lshl_b32 s16, s16, 2
        s_add_u32 s16, s16, s20
        s_lshl_b32 s16, s16, 13
        v_lshlrev_b32 v8, 7, v0
        buffer_load_dword v119, v8, s[12:15], s16 offen
        """)
    A(f"""
    s_waitcnt lgkmcnt(0)
    s_cmp_lg_u32 s20, 0
    s_cbranch_scc1 Lnorank
    s_lshl_b32 s22, s21, 5
    v_mov_b32 v4, s22
    v_mov_b32 v5, 1
    s_mov_b64 exec, 1
    global_atomic_add v6, v4, v5, s[46:47] sc0
    ds_write_b32 v3, v6
    s_waitcnt lgkmcnt(0)
    s_mov_b64 exec, -1
    Lnorank:
    s_barrier
    ds_read_b32 v6, v3
    """)
    srd(A, 8, 6, WS_USED)
    A(f"""
    s_lshr_b32 s23, s21, 2
    s_and_b32 s24, s21, 3
    v_lshlrev_b32 v1, 4, v0
    s_mul_i32 s30, s21, {TEAM_STRIDE}
    s_add_u32 s30, s30, {TEAMB}
    s_mul_i32 s31, s21, {BIG_STRIDE}
    s_add_u32 s31, s31, {BIG}
    v_readfirstlane_b32 s22, v6
    s_barrier
    s_cmp_ge_u32 s22, 32
    s_cbranch_scc1 Lend
    """)
    pro.team_clear(A)
    A(f"""
    s_cmp_lt_u32 s21, 3
    s_cbranch_scc1 Lattn
    s_cmp_eq_u32 s21, 3
    s_cbranch_scc1 Lln
    s_cmp_ge_u32 s22, 28
    s_cbranch_scc1 Lnobt
    """)
    pro.btask(A)
    once(A, 'bt')
    A('Lnobt:\ns_cmp_lg_u32 s21, 7\ns_cbranch_scc1 Lattn')
    A('s_branch Lmlp\nLln:')
    pro.lntask(A)
    once(A, 'clr')
    A('s_branch Lmlp\nLattn:')
    attn.gen_attn(A, opts)
    A('Lmlp:')
    mlp.gen_mlp(A, opts)
    A("""
    Lfail:
    s_mov_b64 exec, 1
    v_mov_b32 v2, 20
    v_mov_b32 v3, 1
    global_atomic_add v2, v3, s[46:47]
    s_endpgm
    Ldone:
    """)
    if dbg:
        once(A, 'end')
        A(f"""
        s_mov_b64 exec, -1
        s_lshl_b32 s58, s21, 5
        s_add_u32 s58, s58, s22
        s_lshl_b32 s58, s58, 2
        s_add_u32 s58, s58, s20
        s_lshl_b32 s58, s58, 6
        s_add_u32 s58, s58, {DBG}
        v_lshrrev_b32 v3, 2, v1
        """)
        for k in range(9): A(f'v_writelane_b32 v2, s{72+2*k}, {k}')
        A('s_mov_b64 exec, 0xffff\nbuffer_store_dword v2, v3, s[8:11], s58 offen')
        A(f"""
        s_or_b32 s58, s22, s20
        s_cmp_lg_u32 s58, 0
        s_cbranch_scc1 Lend
        s_mov_b32 s59, 0
        s_cmp_eq_u32 s21, 0
        s_cselect_b32 s59, 48, s59
        s_cmp_eq_u32 s21, 4
        s_cselect_b32 s59, 52, s59
        s_cmp_eq_u32 s21, 7
        s_cselect_b32 s59, 56, s59
        s_cmp_eq_u32 s59, 0
        s_cbranch_scc1 Lend
        s_sub_u32 s84, s84, s88
        s_sub_u32 s86, s86, s88
        s_mul_i32 s84, s84, 100000
        s_add_u32 s84, s84, s86
        v_mov_b32 v2, s59
        v_mov_b32 v3, s84
        s_mov_b64 exec, 1
        global_store_dword v2, v3, s[46:47]
        """)
    A('Lend:\ns_endpgm')
```
